```python
import torch

def _softmax(x, axis=-1):
    return torch.softmax(x, dim=axis)
def _gelu(x):
    return torch.nn.functional.gelu(x, approximate="tanh")
def _silu(x):
    return torch.nn.functional.silu(x)
def _sigmoid(x):
    return torch.sigmoid(x)
def _layernorm(x, axis=-1, eps=1e-5):
    m = x.mean(dim=axis, keepdim=True)
    v = x.var(dim=axis, keepdim=True, unbiased=False)
    return (x - m) / torch.sqrt(v + eps)
def _scatter_add(tgt, idx, src, axis=0):
    return tgt.clone().index_add_(axis, idx, src)
def _segment_sum(src, seg, n):
    out = torch.zeros((n,) + src.shape[1:], dtype=src.dtype)
    return out.index_add_(0, seg, src)
def _pad(x, pw):
    flat = tuple(v for pair in reversed(pw) for v in pair)
    return torch.nn.functional.pad(x, flat)

kernel_name = 'gated_mix__gqa_block_cached__swiglu_ffn__decode'

def setup_inputs():

    _w = (lambda a: (lambda t: t.to(torch.bfloat16) if t.is_floating_point() else t)(torch.as_tensor(a)))
    def _A_setup():
        B, Sq, D = 4, 1, 512
        Hq, Hkv, Sk, Dh = 32, 8, 4096, 128
        assert Hq % Hkv == 0, (Hq, Hkv)
        return {
            "x": _w((lambda *s: torch.randn(*s, dtype=torch.bfloat16) * 0.05)(B, Sq, D)),
            "k_cache": _w((lambda *s: torch.randn(*s, dtype=torch.bfloat16) * 6.4)(B, Hkv, Sk, Dh)),
            "v_cache": _w((lambda *s: torch.randn(*s, dtype=torch.bfloat16) * 0.2)(B, Hkv, Sk, Dh)),
            "wq": _w((lambda *s: torch.randn(*s, dtype=torch.bfloat16) * 6.4)(D, Hq * Dh) * (D ** -0.5)),
            "wo": _w((lambda *s: torch.randn(*s, dtype=torch.bfloat16) * 0.2)(Hq * Dh, D) * ((Hq * Dh) ** -0.5)),
        }
    _A_in = _A_setup()

    def _B_setup():
        B, S, D, F = 4, 1, 512, 1792
        return {
            "x": _w((lambda *s: torch.randn(*s, dtype=torch.bfloat16) * 0.05)(B, S, D)),
            "w_gate": _w((lambda *s: torch.randn(*s, dtype=torch.bfloat16) * 0.05)(D, F)),
            "w_up": _w((lambda *s: torch.randn(*s, dtype=torch.bfloat16) * 0.05)(D, F)),
            "w_down": _w((lambda *s: torch.randn(*s, dtype=torch.bfloat16) * 0.05)(F, D)),
        }
    _B_in = _B_setup()

    return {
        "A_x": _A_in["x"],
        "A_k_cache": _A_in["k_cache"],
        "A_v_cache": _A_in["v_cache"],
        "A_wq": _A_in["wq"],
        "A_wo": _A_in["wo"],
        "B_x": _B_in["x"],
        "B_w_gate": _B_in["w_gate"],
        "B_w_up": _B_in["w_up"],
        "B_w_down": _B_in["w_down"],
        "gate_w": _w((lambda *s: torch.randn(*s, dtype=torch.bfloat16) * 0.05)(512) * 16.0),
    }

def reference(A_x, A_k_cache, A_v_cache, A_wq, A_wo, B_x, B_w_gate, B_w_up, B_w_down, gate_w):
    def _A_ref(x, k_cache, v_cache, wq, wo):
        B, Sq, D = x.shape
        Hq, Dh = 32, 128
        Hkv = k_cache.shape[1]
        rep = Hq // Hkv
        q = (lambda x, *d: x.permute(*d))((x @ wq).reshape(B, Sq, Hq, Dh), 0, 2, 1, 3)
        k = (lambda x, n, axis: torch.repeat_interleave(x, n, dim=axis))(k_cache, rep, axis=1)
        v = (lambda x, n, axis: torch.repeat_interleave(x, n, dim=axis))(v_cache, rep, axis=1)
        scores = torch.einsum("bhqd,bhkd->bhqk", q, k) * (Dh ** -0.5)
        p = _softmax(scores, axis=-1)
        o = torch.einsum("bhqk,bhkd->bhqd", p, v)
        return (lambda x, *d: x.permute(*d))(o, 0, 2, 1, 3).reshape(B, Sq, Hq * Dh) @ wo

    def _B_ref(x, w_gate, w_up, w_down):
        g = _silu(x @ w_gate)
        u = x @ w_up
        return (g * u) @ w_down

    x = A_x
    g = _sigmoid((x * gate_w).sum(-1, keepdims=True))
    a = _A_ref(x, A_k_cache, A_v_cache, A_wq, A_wo)
    b = _B_ref(x, B_w_gate, B_w_up, B_w_down)
    return g * a + (1 - g) * b
```

```python
import sys, argparse

NAME = "gated_mix__gqa_block_cached__swiglu_ffn__decode"

HEADER = """; Kernarg layout for this problem (104 bytes, ptrs only, base s[0:1]):
"""

WS_EPOCH = 0
WS_QP = 0x1000
WS_STATS = 0x80000
WS_OP = 0x90000
WS_FP = 0x110000
WS_SIZE = 0x200000
STAMP_OFF = 128 << 20

F_P0, F_Q, F_S, F_O = 0, 4, 8, 12
ST_M = 256
ST_L = 384
QL = 512
QSTR = 272
HL = 1664
P0 = 2048
OW = 10240
LDS_SIZE = 26624

LOG2E = 0x3FB8AA3B
SCALE = 0x3DB504F3


class G:
    def __init__(self, opt):
        self.L = []
        self.opt = opt
        self.nst = 0
        self.uid = 0

    def e(self, t):
        self.L.append("  " + t)

    def c(self, t):
        self.L.append("  ; " + t)

    def lab(self, n):
        self.L.append(n + ":")

    def u(self, p):
        self.uid += 1
        return "L_%s_%d" % (p, self.uid)

    def nop(self, n):
        while n > 0:
            k = min(n, 16)
            self.e("s_nop %d" % (k - 1))
            n -= k

    def stamp(self, i):
        if not self.opt.stamps:
            return
        self.e("s_memrealtime s[98:99]")
        self.e("s_waitcnt lgkmcnt(0)")
        self.e("v_writelane_b32 v39, s98, %d" % i)

    def text(self):
        return "\n".join(self.L) + "\n"


def vr(a, n=1):
    return "v%d" % a if n == 1 else "v[%d:%d]" % (a, a + n - 1)


def sr(a, n=1):
    return "s%d" % a if n == 1 else "s[%d:%d]" % (a, a + n - 1)


sWG, sWAVE = 2, 3
sX, sK, sV, sWQ, sWO, sWGT, sWU = 8, 10, 12, 14, 16, 20, 22
sWD, sGW, sOUT, sDBG, sWS = 24, 26, 28, 30, 32
sHKV, sB, sS, sR32 = 34, 35, 36, 37
sR = 38
sKW = 39
dK, dV = 40, 44
dW0, dX, dWS, dWO, dWD, dGW, dOUT, dDBG = 40, 44, 48, 52, 56, 60, 64, 68
sT, sE, sSELLO, sSELHI = 72, 73, 74, 75
sMASK = 76
sSPIN = 84
sT0, sT1, sT2, sT3, sT4, sT5 = 85, 86, 87, 88, 89, 90
sFF = 91
sL2E = 92
sO0 = 93


def srd(g, d, ptr, size):
    g.e("s_mov_b32 s%d, s%d" % (d, ptr))
    g.e("s_and_b32 s%d, s%d, 0xffff" % (d + 1, ptr + 1))
    if isinstance(size, str):
        g.e("s_mov_b32 s%d, %s" % (d + 2, size))
    else:
        g.e("s_mov_b32 s%d, 0x%x" % (d + 2, size))
    g.e("s_mov_b32 s%d, 0x20000" % (d + 3))


def lds_spin(g, addr_v, off, target, tmp, sleep=1, maxit=1 << 20):
    l = g.u("spin")
    d = g.u("spind")
    g.e("s_mov_b32 s%d, %d" % (sSPIN, maxit))
    g.lab(l)
    g.e("ds_read_b32 v%d, v%d offset:%d" % (tmp, addr_v, off))
    g.e("s_waitcnt lgkmcnt(0)")
    g.e("v_readfirstlane_b32 s%d, v%d" % (sT0, tmp))
    g.e("s_cmp_ge_u32 s%d, %d" % (sT0, target))
    g.e("s_cbranch_scc1 %s" % d)
    if sleep:
        g.e("s_sleep %d" % sleep)
    g.e("s_sub_u32 s%d, s%d, 1" % (sSPIN, sSPIN))
    g.e("s_cmp_lg_u32 s%d, 0" % sSPIN)
    g.e("s_cbranch_scc1 %s" % l)
    g.lab(d)


def check_tags(g, regs, tmp):
    for r in regs:
        g.e("v_xor_b32 v%d, s%d, v%d" % (r, sT, r))
    rs = list(regs)
    g.e("v_or3_b32 v%d, v%d, v%d, v%d" % (tmp, rs[0], rs[1], rs[2]))
    rs = rs[3:]
    while len(rs) >= 2:
        g.e("v_or3_b32 v%d, v%d, v%d, v%d" % (tmp, tmp, rs[0], rs[1]))
        rs = rs[2:]
    if rs:
        g.e("v_or_b32 v%d, v%d, v%d" % (tmp, tmp, rs[0]))
    g.e("v_and_b32 v%d, 0xff, v%d" % (tmp, tmp))
    g.e("v_cmp_ne_u32 vcc, 0, v%d" % tmp)


def poll_loop(g, loads, regs, tmp, maxit=1 << 15, sleep=0):
    l = g.u("poll")
    d = g.u("polld")
    g.e("s_mov_b32 s%d, %d" % (sSPIN, maxit))
    g.lab(l)
    for x in loads:
        g.e(x)
    g.e("s_waitcnt vmcnt(0)")
    check_tags(g, regs, tmp)
    g.e("s_cbranch_vccz %s" % d)
    if sleep:
        g.e("s_sleep %d" % sleep)
    g.e("s_sub_u32 s%d, s%d, 1" % (sSPIN, sSPIN))
    g.e("s_cmp_lg_u32 s%d, 0" % sSPIN)
    g.e("s_cbranch_scc1 %s" % l)
    g.lab(d)


def tag(g, dst, src, vT):
    g.e("v_bfi_b32 v%d, s%d, v%d, v%d" % (dst, sFF, vT, src))


def perm_block(g, raw, dst, e):
    m = e >> 1
    sel = sSELHI if (e & 1) else sSELLO
    for tp in range(4):
        g.e("v_perm_b32 v%d, v%d, v%d, s%d" % (dst + 4 * e + tp, raw + 4 * (2 * tp + 1) + m, raw + 4 * (2 * tp) + m, sel))


def transpose_tile(g, raw, dst):
    for e in range(8):
        perm_block(g, raw, dst, e)


def mfma(g, d, a, b, c):
    cs = "0" if c is None else vr(c, 4)
    g.e("v_mfma_f32_16x16x32_bf16 %s, %s, %s, %s" % (vr(d, 4), vr(a, 4), vr(b, 4), cs))


def round_bf16_pair(g, a, b, t):
    g.e("v_cvt_pk_bf16_f32 v%d, v%d, v%d" % (t, a, b))
    g.e("v_lshlrev_b32 v%d, 16, v%d" % (a, t))
    g.e("v_and_b32 v%d, 0xffff0000, v%d" % (b, t))


def swap_reduce(g, op, regs, tmps, which):
    for r, t in zip(regs, tmps):
        g.e("v_mov_b32 v%d, v%d" % (t, r))
    n = len(regs)
    if n < 3:
        g.nop(3 - n)
    else:
        g.nop(1)
    for r, t in zip(regs, tmps):
        g.e("v_permlane%d_swap_b32 v%d, v%d" % (which, r, t))
    g.nop(1)
    for r, t in zip(regs, tmps):
        g.e("%s v%d, v%d, v%d" % (op, r, r, t))


def dpp_reduce(g, op, regs, rors):
    n = len(regs)
    for ro in rors:
        if n < 3:
            g.nop(3 - n)
        for r in regs:
            g.e("%s_dpp v%d, v%d, v%d row_ror:%d row_mask:0xf bank_mask:0xf" % (op, r, r, r, ro))


def prologue(g):
    g.e("s_cmp_ge_u32 s2, 256")
    g.e("s_cbranch_scc1 L_END")
    if g.opt.stamps:
        g.e("s_memrealtime s[98:99]")
    g.e("s_load_dwordx16 s[8:23], s[0:1], 0")
    g.e("s_load_dwordx8 s[24:31], s[0:1], 64")
    g.e("s_load_dwordx2 s[32:33], s[0:1], 96")
    g.e("v_lshrrev_b32 v1, 6, v0")
    g.e("v_and_b32 v0, 63, v0")
    g.e("v_mov_b32 v2, 0")
    g.e("v_readfirstlane_b32 s3, v1")
    g.e("v_lshlrev_b32 v3, 2, v0")
    g.e("ds_write_b32 v3, v2")
    g.e("s_and_b32 s%d, s2, 7" % sHKV)
    g.e("s_lshr_b32 s%d, s2, 3" % sR32)
    g.e("s_lshr_b32 s%d, s%d, 3" % (sB, sR32))
    g.e("s_and_b32 s%d, s%d, 7" % (sS, sR32))
    g.e("s_lshl_b32 s%d, s%d, 3" % (sR, sHKV))
    g.e("s_add_u32 s%d, s%d, s%d" % (sR, sR, sS))
    g.e("s_mov_b32 s%d, 0x05040100" % sSELLO)
    g.e("s_mov_b32 s%d, 0x07060302" % sSELHI)
    g.e("s_mov_b32 s%d, 0x%x" % (sL2E, LOG2E))
    g.e("s_waitcnt lgkmcnt(0)")
    if g.opt.stamps:
        g.e("v_mov_b32 v39, 0")
        g.e("v_writelane_b32 v39, s98, 0")
    g.e("s_barrier")
    g.stamp(1)
    g.e("s_cmp_ge_u32 s3, 4")
    g.e("s_cbranch_scc1 L_KV")


def write_stamps(g):
    if not g.opt.stamps:
        return
    n = g.opt.stamps
    g.e("s_mul_i32 s%d, s2, 12" % sT0)
    g.e("s_add_u32 s%d, s%d, s3" % (sT0, sT0))
    g.e("s_mul_i32 s%d, s%d, %d" % (sT0, sT0, n * 8))
    g.e("s_add_u32 s%d, s%d, 0x%x" % (sT0, sT0, STAMP_OFF))
    g.e("v_lshlrev_b32 v1, 3, v0")
    g.e("v_add_u32 v1, s%d, v1" % sT0)
    g.e("v_mov_b32 v2, v39")
    g.e("v_mov_b32 v3, 0")
    g.e("s_mov_b64 exec, 0x%x" % ((1 << n) - 1))
    g.e("global_store_dwordx2 v1, v[2:3], s[32:33]")
    g.e("s_waitcnt vmcnt(0)")


def kv_wave(g):
    o = g.opt
    KB, VB = 40, 104
    vKoff, vVoff, vZ = 1, 2, 3
    QF = 4
    S = 20
    t0, t1, t2 = 36, 37, 38
    g.lab("L_KV")
    g.e("s_sub_u32 s%d, s3, 4" % sKW)
    srd(g, dK, sK, 33554432)
    srd(g, dV, sV, 33554432)
    g.e("s_lshl_b32 s%d, s%d, 3" % (sT0, sB))
    g.e("s_add_u32 s%d, s%d, s%d" % (sT0, sT0, sHKV))
    g.e("s_lshl_b32 s%d, s%d, 20" % (sT0, sT0))
    g.e("s_lshl_b32 s%d, s%d, 17" % (sT1, sS))
    g.e("s_add_u32 s%d, s%d, s%d" % (sT0, sT0, sT1))
    g.e("s_lshl_b32 s%d, s%d, 14" % (sT1, sKW))
    g.e("s_add_u32 s%d, s%d, s%d" % (sO0, sT0, sT1))
    for T in range(1, 4):
        g.e("s_add_u32 s%d, s%d, %d" % (sO0 + T, sO0, 4096 * T))
    g.e("v_and_b32 v4, 3, v0")
    g.e("v_lshlrev_b32 v4, 10, v4")
    g.e("v_bfe_u32 v5, v0, 2, 2")
    g.e("v_lshlrev_b32 v5, 8, v5")
    g.e("v_and_b32 v6, 0x30, v0")
    g.e("v_add3_u32 v%d, v4, v5, v6" % vKoff)
    g.e("v_lshlrev_b32 v%d, 4, v0" % vVoff)
    knt = " nt" if o.ntk else ""
    vnt = " nt" if o.ntv else ""
    for T in range(4):
        for jj in range(4):
            d = KB + 16 * T + 4 * jj
            g.e("buffer_load_dwordx4 %s, v%d, s[%d:%d], s%d offen offset:%d%s" % (vr(d, 4), vKoff, dK, dK + 3, sO0 + T, jj * 64, knt))
    for n in range(2):
        for t in range(8):
            d = VB + 32 * n + 4 * t
            g.e("buffer_load_dwordx4 %s, v%d, s[%d:%d], s%d offen offset:%d%s" % (vr(d, 4), vVoff, dV, dV + 3, sO0 + 2 * n + (t >> 2), (t & 3) * 1024, vnt))
    g.stamp(2)
    g.e("v_mov_b32 v%d, 0" % vZ)
    g.e("v_bfe_u32 v5, v0, 2, 2")
    g.e("v_mul_u32_u24 v5, %d, v5" % QSTR)
    g.e("v_and_b32 v6, 0x30, v0")
    g.e("v_add_u32 v%d, v5, v6" % vKoff)
    lds_spin(g, vZ, F_Q, 4, t0, sleep=2)
    g.stamp(3)
    for jj in range(4):
        g.e("ds_read_b128 %s, v%d offset:%d" % (vr(QF + 4 * jj, 4), vKoff, QL + 64 * jj))
    g.e("s_waitcnt lgkmcnt(0)")
    for T in range(4):
        g.e("s_waitcnt vmcnt(%d)" % (16 + 4 * (3 - T)))
        for jj in range(4):
            mfma(g, S + 4 * T, KB + 16 * T + 4 * jj, QF + 4 * jj, None if jj == 0 else S + 4 * T)
    g.stamp(4)
    g.nop(8)
    for p in range(8):
        a, b = S + 2 * p, S + 2 * p + 1
        round_bf16_pair(g, a, b, t0 + (p & 1))
    for r in range(16):
        g.e("v_mul_f32 v%d, 0x%x, v%d" % (S + r, SCALE, S + r))
    for p in range(8):
        a, b = S + 2 * p, S + 2 * p + 1
        round_bf16_pair(g, a, b, t0 + (p & 1))
    vM = 4
    vL = 5
    g.e("v_max3_f32 v%d, v%d, v%d, v%d" % (vM, S, S + 1, S + 2))
    g.e("v_max3_f32 v%d, v%d, v%d, v%d" % (6, S + 3, S + 4, S + 5))
    g.e("v_max3_f32 v%d, v%d, v%d, v%d" % (7, S + 6, S + 7, S + 8))
    g.e("v_max3_f32 v%d, v%d, v%d, v%d" % (8, S + 9, S + 10, S + 11))
    g.e("v_max3_f32 v%d, v%d, v%d, v%d" % (9, S + 12, S + 13, S + 14))
    g.e("v_max3_f32 v%d, v%d, v%d, v%d" % (vM, vM, 6, 7))
    g.e("v_max3_f32 v%d, v%d, v%d, v%d" % (8, 8, 9, S + 15))
    g.e("v_max_f32 v%d, v%d, v%d" % (vM, vM, 8))
    swap_reduce(g, "v_max_f32", [vM], [6], 16)
    swap_reduce(g, "v_max_f32", [vM], [6], 32)
    g.e("v_mul_f32 v6, s%d, v%d" % (sL2E, vM))
    for r in range(16):
        g.e("v_fma_f32 v%d, v%d, s%d, -v6" % (S + r, S + r, sL2E))
    for r in range(16):
        g.e("v_exp_f32 v%d, v%d" % (S + r, S + r))
    g.nop(1)
    g.e("v_add_f32 v%d, v%d, v%d" % (vL, S, S + 1))
    g.e("v_add_f32 v7, v%d, v%d" % (S + 2, S + 3))
    for r in range(4, 16, 2):
        g.e("v_add_f32 v%d, v%d, v%d" % (vL, vL, S + r))
        g.e("v_add_f32 v7, v7, v%d" % (S + r + 1))
    g.e("v_add_f32 v%d, v%d, v7" % (vL, vL))
    PF = 8
    for p in range(8):
        g.e("v_cvt_pk_bf16_f32 v%d, v%d, v%d" % (PF + p, S + 2 * p, S + 2 * p + 1))
    swap_reduce(g, "v_add_f32", [vL], [6], 16)
    swap_reduce(g, "v_add_f32", [vL], [6], 32)
    g.e("v_lshlrev_b32 v6, 3, v0")
    g.e("s_lshl_b32 s%d, s%d, 2" % (sT0, sKW))
    g.e("v_add_u32 v6, s%d, v6" % sT0)
    g.e("v_mov_b32 v7, 1")
    g.e("s_mov_b64 exec, 0x1111")
    g.e("ds_write_b32 v6, v%d offset:%d" % (vM, ST_M))
    g.e("ds_write_b32 v6, v%d offset:%d" % (vL, ST_L))
    g.e("s_mov_b64 exec, 1")
    g.e("ds_add_u32 v%d, v7 offset:%d" % (vZ, F_S))
    g.e("s_mov_b64 exec, -1")
    g.stamp(5)
    PB, ACC = 40, 72

    def pv_tile(n, last):
        raw = VB + 32 * n
        if not last:
            g.e("s_waitcnt vmcnt(8)")
            for e in range(8):
                perm_block(g, raw, PB, e)
                if e >= 1:
                    mfma(g, ACC + 4 * (e - 1), PF + 4 * n, PB + 4 * (e - 1), None if n == 0 else ACC + 4 * (e - 1))
            g.nop(2)
            mfma(g, ACC + 28, PF + 4 * n, PB + 28, None if n == 0 else ACC + 28)
        else:
            for tp in range(4):
                g.e("s_waitcnt vmcnt(%d)" % (6 - 2 * tp))
                for e in range(8):
                    m = e >> 1
                    sel = sSELHI if (e & 1) else sSELLO
                    g.e("v_perm_b32 v%d, v%d, v%d, s%d" % (PB + 4 * e + tp, raw + 4 * (2 * tp + 1) + m, raw + 4 * (2 * tp) + m, sel))
            g.nop(2)
            for e in range(8):
                mfma(g, ACC + 4 * e, PF + 4 * n, PB + 4 * e, None if n == 0 else ACC + 4 * e)

    pv_tile(0, False)
    g.stamp(6)
    lds_spin(g, vZ, F_S, 8, t0, sleep=1)
    g.e("v_lshrrev_b32 v6, 4, v0")
    g.e("v_lshlrev_b32 v6, 5, v6")
    g.e("ds_read_b128 v[16:19], v6 offset:%d" % ST_M)
    g.e("ds_read_b128 v[20:23], v6 offset:%d" % (ST_M + 16))
    g.e("s_lshl_b32 s%d, s%d, 2" % (sT0, sKW))
    g.e("v_add_u32 v7, s%d, v6" % sT0)
    g.e("ds_read_b32 v24, v7 offset:%d" % ST_M)
    g.e("s_waitcnt lgkmcnt(0)")
    g.e("v_max3_f32 v16, v16, v17, v18")
    g.e("v_max3_f32 v19, v19, v20, v21")
    g.e("v_max3_f32 v16, v16, v22, v23")
    g.e("v_max_f32 v16, v16, v19")
    g.e("v_sub_f32 v24, v24, v16")
    g.e("v_mul_f32 v24, s%d, v24" % sL2E)
    g.e("v_exp_f32 v24, v24")
    g.e("v_lshrrev_b32 v6, 4, v0")
    g.e("v_lshlrev_b32 v6, 9, v6")
    g.e("v_and_b32 v7, 15, v0")
    g.e("v_lshlrev_b32 v7, 4, v7")
    g.e("s_lshl_b32 s%d, s%d, 11" % (sT0, sKW))
    g.e("v_add3_u32 v6, v6, v7, s%d" % sT0)
    g.e("v_mov_b32 v7, 1")
    g.stamp(7)
    pv_tile(1, True)
    g.nop(8)
    for e in range(8):
        g.e("v_mul_f32 v%d, v24, v%d" % (16 + e, ACC + 4 * e))
    g.e("ds_write_b128 v6, v[16:19] offset:%d" % OW)
    g.e("ds_write_b128 v6, v[20:23] offset:%d" % (OW + 256))
    g.e("s_mov_b64 exec, 1")
    g.e("ds_add_u32 v%d, v7 offset:%d" % (vZ, F_O))
    g.e("s_mov_b64 exec, -1")
    g.e("s_waitcnt lgkmcnt(0)")
    g.stamp(8)
    write_stamps(g)
    g.e("s_endpgm")


def aux_wave(g):
    o = g.opt
    P, X, A, B = 40, 72, 104, 136
    vZ = 1
    vT = 2
    vC16 = 3
    vG = 4
    vW = 5
    wnt = " nt" if o.ntw else ""
    g.lab("L_AUX")
    g.e("s_setprio 3")
    g.e("s_load_dword s%d, s[%d:%d], %d" % (sE, sWS, sWS + 1, WS_EPOCH))
    srd(g, dX, sX, 4096)
    srd(g, dWS, sWS, WS_SIZE)
    g.e("v_mov_b32 v%d, 0" % vZ)
    g.e("v_and_b32 v%d, 15, v0" % vC16)
    g.e("v_lshlrev_b32 v%d, 4, v%d" % (vC16, vC16))
    g.e("v_lshrrev_b32 v%d, 4, v0" % vG)
    g.e("s_mov_b32 s%d, 0xff" % sFF)
    sStr, sOff, sUnit, sRg = sT1, sT2, sT3, sT4
    g.e("s_cmp_lt_u32 s%d, 16" % sR32)
    g.e("s_cbranch_scc0 L_P0_FFN")
    srd(g, dW0, sWQ, 4194304)
    g.e("s_mov_b32 s%d, 8192" % sStr)
    g.e("s_and_b32 s%d, s%d, 3" % (sT0, sR32))
    g.e("s_lshl_b32 s%d, s%d, 2" % (sT5, sHKV))
    g.e("s_add_u32 s%d, s%d, s%d" % (sT0, sT0, sT5))
    g.e("s_lshr_b32 s%d, s%d, 2" % (sRg, sR32))
    g.e("s_lshl_b32 s%d, s%d, 2" % (sUnit, sT0))
    g.e("s_add_u32 s%d, s%d, s%d" % (sUnit, sUnit, sRg))
    g.e("s_lshl_b32 s%d, s%d, 8" % (sOff, sT0))
    g.e("s_branch L_P0_GO")
    g.lab("L_P0_FFN")
    g.e("s_sub_u32 s%d, s%d, 16" % (sT0, sR32))
    g.e("s_lshl_b32 s%d, s%d, 3" % (sT0, sT0))
    g.e("s_add_u32 s%d, s%d, s%d" % (sT0, sT0, sHKV))
    g.e("s_cmp_ge_u32 s%d, 112" % sT0)
    g.e("s_cbranch_scc1 L_P0_DONE")
    g.e("s_add_u32 s%d, s%d, 128" % (sUnit, sT0))
    g.e("s_mov_b32 s%d, 3584" % sStr)
    g.e("s_cmp_ge_u32 s%d, 56" % sT0)
    g.e("s_cbranch_scc1 L_P0_UP")
    srd(g, dW0, sWGT, 1835008)
    g.e("s_branch L_P0_FFN2")
    g.lab("L_P0_UP")
    srd(g, dW0, sWU, 1835008)
    g.e("s_sub_u32 s%d, s%d, 56" % (sT0, sT0))
    g.lab("L_P0_FFN2")
    g.e("s_and_b32 s%d, s%d, 3" % (sRg, sT0))
    g.e("s_lshr_b32 s%d, s%d, 2" % (sT0, sT0))
    g.e("s_lshl_b32 s%d, s%d, 8" % (sOff, sT0))
    g.lab("L_P0_GO")
    g.e("s_lshl_b32 s%d, s%d, 7" % (sRg, sRg))
    g.e("s_lshl_b32 s%d, s3, 5" % sT0)
    g.e("s_add_u32 s%d, s%d, s%d" % (sRg, sRg, sT0))
    g.e("s_mul_i32 s%d, s%d, s%d" % (sT0, sRg, sStr))
    g.e("s_add_u32 s%d, s%d, s%d" % (sOff, sOff, sT0))
    g.e("s_lshl_b32 s%d, s%d, 1" % (sRg, sRg))
    g.e("v_bfe_u32 v6, v0, 2, 2")
    g.e("v_lshlrev_b32 v6, 10, v6")
    g.e("v_and_b32 v7, 0x30, v0")
    g.e("v_add_u32 v6, v6, v7")
    XF = 8
    g.e("buffer_load_dwordx4 %s, v6, s[%d:%d], s%d offen" % (vr(XF, 4), dX, dX + 3, sRg))
    g.e("v_lshlrev_b32 v7, 3, v%d" % vG)
    g.e("v_mad_u32_u24 v%d, v7, s%d, v%d" % (vW, sStr, vC16))
    for t in range(8):
        g.e("buffer_load_dwordx4 %s, v%d, s[%d:%d], s%d offen%s" % (vr(P + 4 * t, 4), vW, dW0, dW0 + 3, sOff, wnt))
        if t < 7:
            g.e("s_add_u32 s%d, s%d, s%d" % (sOff, sOff, sStr))
    for u in range(4):
        m = (0x1111111111111111 << u) & 0xFFFFFFFFFFFFFFFF
        g.e("s_mov_b32 s%d, 0x%x" % (sMASK + 2 * u, m & 0xFFFFFFFF))
        g.e("s_mov_b32 s%d, 0x%x" % (sMASK + 2 * u + 1, m >> 32))
    g.e("s_waitcnt vmcnt(8)")
    for u in range(4):
        for k in range(4):
            g.e("v_cndmask_b32 v%d, 0, v%d, s[%d:%d]" % (A + 4 * u + k, XF + k, sMASK + 2 * u, sMASK + 2 * u + 1))
    g.stamp(2)
    g.e("s_waitcnt vmcnt(0)")
    g.stamp(3)
    D0 = 20
    order = [0, 4, 1, 5, 2, 6, 3, 7]
    for i, e in enumerate(order):
        perm_block(g, P, X, e)
        if i >= 1:
            pe = order[i - 1]
            mfma(g, D0 + 4 * (pe >> 2), A + 4 * (pe & 3), X + 4 * pe, None if (pe & 3) == 0 else D0 + 4 * (pe >> 2))
    g.nop(2)
    mfma(g, D0 + 4, A + 12, X + 28, D0 + 4)
    g.e("v_lshlrev_b32 v6, 9, v%d" % vG)
    g.e("s_lshl_b32 s%d, s3, 11" % sT0)
    g.e("v_add3_u32 v6, v6, v%d, s%d" % (vC16, sT0))
    g.e("v_mov_b32 v7, 1")
    g.nop(6)
    g.e("ds_write_b128 v6, %s offset:%d" % (vr(D0, 4), P0))
    g.e("ds_write_b128 v6, %s offset:%d" % (vr(D0 + 4, 4), P0 + 256))
    g.e("s_mov_b64 exec, 1")
    g.e("ds_add_rtn_u32 v8, v%d, v7 offset:%d" % (vZ, F_P0))
    g.e("s_mov_b64 exec, -1")
    g.e("s_waitcnt lgkmcnt(0)")
    g.e("v_readfirstlane_b32 s%d, v8" % sT0)
    g.e("s_add_u32 s%d, s%d, 1" % (sT, sE))
    g.e("s_and_b32 s%d, s%d, 0xff" % (sT, sT))
    g.e("s_cmp_eq_u32 s%d, 3" % sT0)
    g.e("s_cbranch_scc0 L_P0_DONE")
    g.e("v_mov_b32 v%d, s%d" % (vT, sT))
    g.e("v_lshlrev_b32 v6, 4, v0")
    for n in range(2):
        for w in range(4):
            g.e("ds_read_b128 %s, v6 offset:%d" % (vr(P + 16 * n + 4 * w, 4), P0 + w * 2048 + n * 1024))
    g.e("v_lshrrev_b32 v6, 5, v0")
    g.e("v_lshlrev_b32 v6, 9, v6")
    g.e("v_lshlrev_b32 v7, 1, v%d" % vC16)
    g.e("v_and_b32 v8, 16, v0")
    g.e("v_add3_u32 v6, v6, v7, v8")
    g.e("s_lshl_b32 s%d, s%d, 11" % (sT0, sUnit))
    g.e("s_add_u32 s%d, s%d, 0x%x" % (sT0, sT0, WS_QP))
    g.e("s_waitcnt lgkmcnt(0)")
    for n in range(2):
        b = P + 16 * n
        for k in range(4):
            g.e("v_add_f32 v%d, v%d, v%d" % (b + k, b + k, b + 4 + k))
            g.e("v_add_f32 v%d, v%d, v%d" % (b + 8 + k, b + 8 + k, b + 12 + k))
        for k in range(4):
            g.e("v_add_f32 v%d, v%d, v%d" % (b + k, b + k, b + 8 + k))
        for k in range(4):
            tag(g, b + k, b + k, vT)
        g.e("buffer_store_dwordx4 %s, v6, s[%d:%d], s%d offen offset:%d sc1" % (vr(b, 4), dWS, dWS + 3, sT0, n * 1024))
    g.lab("L_P0_DONE")
    g.e("s_waitcnt lgkmcnt(0)")
    g.e("s_add_u32 s%d, s%d, 1" % (sT, sE))
    g.e("s_and_b32 s%d, s%d, 0xff" % (sT, sT))
    g.e("v_mov_b32 v%d, s%d" % (vT, sT))
    g.stamp(4)
    srd(g, dDBG, sDBG, 256)
    g.e("s_cmp_eq_u32 s3, 3")
    g.e("s_cbranch_scc0 L_NOCNT")
    g.e("v_mov_b32 v7, 1")
    g.e("s_mov_b64 exec, 1")
    g.e("buffer_atomic_add v7, v%d, s[%d:%d], 0 offen sc1" % (vZ, dDBG, dDBG + 3))
    g.e("s_mov_b64 exec, -1")
    g.lab("L_NOCNT")
    srd(g, dGW, sGW, 1024)
    g.e("v_lshlrev_b32 v6, 4, v0")
    g.e("s_lshl_b32 s%d, s%d, 10" % (sT0, sB))
    GX, GWv = 8, 12
    g.e("buffer_load_dwordx4 %s, v6, s[%d:%d], s%d offen" % (vr(GX, 4), dX, dX + 3, sT0))
    g.e("buffer_load_dwordx4 %s, v6, s[%d:%d], 0 offen" % (vr(GWv, 4), dGW, dGW + 3))
    vQ, vF = 6, 7
    g.e("v_lshrrev_b32 v16, 5, v0")
    g.e("v_lshlrev_b32 v16, 11, v16")
    g.e("v_and_b32 v17, 31, v0")
    g.e("v_lshlrev_b32 v17, 4, v17")
    g.e("v_add_u32 v%d, v16, v17" % vQ)
    g.e("s_lshl_b32 s%d, s%d, 2" % (sT1, sHKV))
    g.e("s_add_u32 s%d, s%d, s3" % (sT1, sT1))
    g.e("s_lshl_b32 s%d, s%d, 13" % (sT1, sT1))
    g.e("s_lshl_b32 s%d, s%d, 9" % (sT2, sB))
    g.e("s_add_u32 s%d, s%d, s%d" % (sT1, sT1, sT2))
    g.e("s_add_u32 s%d, s%d, 0x%x" % (sT1, sT1, WS_QP))
    g.e("s_add_u32 s%d, s%d, 4096" % (sT2, sT1))
    g.e("v_and_b32 v16, 7, v0")
    g.e("v_min_u32 v16, 6, v16")
    g.e("v_lshlrev_b32 v16, 2, v16")
    g.e("s_mul_i32 s%d, s%d, 28" % (sT3, sR))
    g.e("v_add_u32 v16, s%d, v16" % sT3)
    g.e("v_lshrrev_b32 v17, 7, v16")
    g.e("v_and_b32 v16, 127, v16")
    g.e("v_lshlrev_b32 v16, 2, v16")
    g.e("v_lshlrev_b32 v17, 2, v17")
    g.e("v_bfe_u32 v18, v0, 3, 2")
    g.e("v_add_u32 v17, v17, v18")
    g.e("v_lshrrev_b32 v18, 5, v0")
    g.e("v_mul_u32_u24 v18, 56, v18")
    g.e("v_add_u32 v17, v17, v18")
    g.e("v_lshlrev_b32 v17, 11, v17")
    g.e("v_add_u32 v%d, v16, v17" % vF)
    g.e("s_lshl_b32 s%d, s%d, 9" % (sT3, sB))
    g.e("s_add_u32 s%d, s%d, 0x%x" % (sT3, sT3, WS_QP + 128 * 2048))
    Q0, Q1, F0 = 16, 20, 24
    poll_loop(g, [
        "buffer_load_dwordx4 %s, v%d, s[%d:%d], s%d offen sc1" % (vr(Q0, 4), vQ, dWS, dWS + 3, sT1),
        "buffer_load_dwordx4 %s, v%d, s[%d:%d], s%d offen sc1" % (vr(Q1, 4), vQ, dWS, dWS + 3, sT2),
        "buffer_load_dwordx4 %s, v%d, s[%d:%d], s%d offen sc1" % (vr(F0, 4), vF, dWS, dWS + 3, sT3),
    ], list(range(Q0, Q0 + 12)), 28)
    g.stamp(5)
    for k in range(4):
        g.e("v_add_f32 v%d, v%d, v%d" % (Q0 + k, Q0 + k, Q1 + k))
    swap_reduce(g, "v_add_f32", [Q0 + k for k in range(4)], [Q1 + k for k in range(4)], 32)
    g.e("v_cvt_pk_bf16_f32 v%d, v%d, v%d" % (Q0, Q0, Q0 + 1))
    g.e("v_cvt_pk_bf16_f32 v%d, v%d, v%d" % (Q0 + 1, Q0 + 2, Q0 + 3))
    g.e("v_and_b32 v28, 31, v0")
    g.e("v_lshlrev_b32 v28, 3, v28")
    g.e("s_mul_i32 s%d, s3, %d" % (sT0, QSTR))
    g.e("v_add_u32 v28, s%d, v28" % sT0)
    g.e("v_mov_b32 v29, 1")
    g.e("s_mov_b32 exec_hi, 0")
    g.e("ds_write_b64 v28, %s offset:%d" % (vr(Q0, 2), QL))
    g.e("s_mov_b64 exec, 1")
    g.e("ds_add_u32 v%d, v29 offset:%d" % (vZ, F_Q))
    g.e("s_mov_b64 exec, -1")
    srd(g, dWO, sWO, 4194304)
    srd(g, dWD, sWD, 1835008)
    g.e("v_lshlrev_b32 v%d, 13, v%d" % (vW, vG))
    g.e("s_lshl_b32 s%d, s3, 8" % sT0)
    g.e("v_add3_u32 v%d, v%d, v%d, s%d" % (vW, vW, vC16, sT0))
    vW2 = 28
    g.e("v_mov_b32 v29, 0x40000000")
    g.e("v_cmp_eq_u32 vcc, 3, v%d" % vG)
    g.nop(1)
    g.e("v_cndmask_b32 v%d, v%d, v29, vcc" % (vW2, vW))
    g.e("s_mul_i32 s%d, s%d, %d" % (sT0, sR, 28 * 1024))
    g.e("s_add_u32 s%d, s%d, 4096" % (sT1, sT0))
    wont = " nt" if o.ntwo else ""
    for t in range(8):
        g.e("buffer_load_dwordx4 %s, v%d, s[%d:%d], s%d offen offset:%d%s" % (vr(B + 4 * t, 4), vW if t < 4 else vW2, dWD, dWD + 3, sT0 if t < 4 else sT1, (t & 3) * 1024, wont))
    g.e("s_lshl_b32 s%d, s%d, 16" % (sT0, sR))
    for n in range(2):
        dst = P if n == 0 else A
        for t in range(8):
            if t == 0 or t == 4:
                g.e("s_add_u32 s%d, s%d, %d" % (sT1, sT0, n * 32768 + (t >> 2) * 4096))
            g.e("buffer_load_dwordx4 %s, v%d, s[%d:%d], s%d offen offset:%d%s" % (vr(dst + 4 * t, 4), vW, dWO, dWO + 3, sT1, (t & 3) * 1024, wont))
    g.stamp(6)
    Fr = [F0 + k for k in range(4)]
    dpp_reduce(g, "v_add_f32", Fr, [8])
    swap_reduce(g, "v_add_f32", Fr, [16, 17, 18, 19], 16)
    round_bf16_pair(g, F0, F0 + 1, 16)
    round_bf16_pair(g, F0 + 2, F0 + 3, 17)
    for k in range(4):
        g.e("v_mul_f32 v%d, s%d, v%d" % (16 + k, sL2E, F0 + k))
    for k in range(4):
        g.e("v_exp_f32 v%d, -v%d" % (16 + k, 16 + k))
    g.nop(1)
    for k in range(4):
        g.e("v_add_f32 v%d, 1.0, v%d" % (16 + k, 16 + k))
    for k in range(4):
        g.e("v_rcp_f32 v%d, v%d" % (16 + k, 16 + k))
    g.nop(1)
    for k in range(4):
        g.e("v_mul_f32 v%d, v%d, v%d" % (16 + k, 16 + k, F0 + k))
    round_bf16_pair(g, 16, 17, 20)
    round_bf16_pair(g, 18, 19, 21)
    for k in range(4):
        g.e("v_mov_b32 v%d, v%d" % (20 + k, F0 + k))
    g.nop(1)
    for k in range(4):
        g.e("v_permlane32_swap_b32 v%d, v%d" % (F0 + k, 20 + k))
    g.nop(1)
    for k in range(4):
        g.e("v_mul_f32 v%d, v%d, v%d" % (16 + k, 16 + k, 20 + k))
    g.e("v_cvt_pk_bf16_f32 v16, v16, v17")
    g.e("v_cvt_pk_bf16_f32 v17, v18, v19")
    g.e("v_cmp_eq_u32 vcc, 7, v0")
    g.nop(1)
    g.e("v_cndmask_b32 v16, v16, v%d, vcc" % vZ)
    g.e("v_cndmask_b32 v17, v17, v%d, vcc" % vZ)
    g.e("v_lshlrev_b32 v18, 3, v0")
    g.e("s_lshl_b32 s%d, s3, 6" % sT0)
    g.e("v_add_u32 v18, s%d, v18" % sT0)
    g.e("s_mov_b64 exec, 0xff")
    g.e("ds_write_b64 v18, v[16:17] offset:%d" % HL)
    g.e("s_mov_b64 exec, -1")
    g.e("v_lshlrev_b32 v18, 4, v%d" % vG)
    g.e("v_add_u32 v18, s%d, v18" % sT0)
    HF = 20
    g.e("ds_read_b128 %s, v18 offset:%d" % (vr(HF, 4), HL))
    for k in range(4):
        g.e("v_lshlrev_b32 v%d, 16, v%d" % (28 + 0, GX + k))
        g.e("v_and_b32 v%d, 0xffff0000, v%d" % (29, GX + k))
        g.e("v_lshlrev_b32 v%d, 16, v%d" % (30, GWv + k))
        g.e("v_and_b32 v%d, 0xffff0000, v%d" % (31, GWv + k))
        g.e("v_mul_f32 v28, v28, v30")
        g.e("v_mul_f32 v29, v29, v31")
        round_bf16_pair(g, 28, 29, 30)
        if k == 0:
            g.e("v_add_f32 v16, v28, v29")
        else:
            g.e("v_add_f32 v28, v28, v29")
            g.e("v_add_f32 v16, v16, v28")
    dpp_reduce(g, "v_add_f32", [16], [8, 4, 2, 1])
    swap_reduce(g, "v_add_f32", [16], [17], 16)
    swap_reduce(g, "v_add_f32", [16], [17], 32)
    g.e("v_cvt_pk_bf16_f32 v16, v16, v16")
    g.e("v_lshlrev_b32 v16, 16, v16")
    g.e("v_mul_f32 v16, s%d, v16" % sL2E)
    g.e("v_exp_f32 v16, -v16")
    g.nop(1)
    g.e("v_add_f32 v16, 1.0, v16")
    g.e("v_rcp_f32 v16, v16")
    g.nop(1)
    vGATE, vGM = 8, 9
    g.e("v_cvt_pk_bf16_f32 v16, v16, v16")
    g.e("v_lshlrev_b32 v%d, 16, v16" % vGATE)
    g.e("v_sub_f32 v16, 1.0, v%d" % vGATE)
    g.e("v_cvt_pk_bf16_f32 v16, v16, v16")
    g.e("v_lshlrev_b32 v%d, 16, v16" % vGM)
    g.stamp(7)
    g.e("s_cmp_eq_u32 s2, 0")
    g.e("s_cbranch_scc0 L_NOBUMP")
    g.e("s_cmp_eq_u32 s3, 3")
    g.e("s_cbranch_scc0 L_NOBUMP")
    g.e("s_mov_b32 s%d, %d" % (sSPIN, 1 << 15))
    g.lab("L_BUMP")
    g.e("buffer_load_dword v16, v%d, s[%d:%d], 0 offen sc1" % (vZ, dDBG, dDBG + 3))
    g.e("s_waitcnt vmcnt(0)")
    g.e("v_readfirstlane_b32 s%d, v16" % sT0)
    g.e("s_cmp_ge_u32 s%d, 256" % sT0)
    g.e("s_cbranch_scc1 L_BUMP2")
    g.e("s_sleep 8")
    g.e("s_sub_u32 s%d, s%d, 1" % (sSPIN, sSPIN))
    g.e("s_cmp_lg_u32 s%d, 0" % sSPIN)
    g.e("s_cbranch_scc1 L_BUMP")
    g.lab("L_BUMP2")
    g.e("s_add_u32 s%d, s%d, 1" % (sT0, sE))
    g.e("v_mov_b32 v16, s%d" % sT0)
    g.e("s_mov_b64 exec, 1")
    g.e("buffer_store_dword v16, v%d, s[%d:%d], 0 offen offset:%d sc1" % (vZ, dWS, dWS + 3, WS_EPOCH))
    g.e("s_mov_b64 exec, -1")
    g.lab("L_NOBUMP")
    g.e("s_waitcnt vmcnt(0) lgkmcnt(0)")
    g.stamp(8)
    transpose_tile(g, B, X)
    transpose_tile(g, P, B)
    transpose_tile(g, A, P)
    for e in range(8):
        mfma(g, A + 4 * e, HF, X + 4 * e, None)
    g.e("s_mov_b32 s%d, 0xffff0000" % sMASK)
    g.e("s_mov_b32 s%d, 0xffff0000" % (sMASK + 1))
    g.nop(8)
    FF = 12
    for k in range(4):
        g.e("v_cndmask_b32 v%d, v%d, v%d, s[%d:%d]" % (FF + k, A + 4 * k, A + 4 * (4 + k), sMASK, sMASK + 1))
    for k in range(4):
        g.e("v_mul_f32 v%d, v%d, v%d" % (FF + k, vGM, FF + k))
    g.stamp(9)
    lds_spin(g, vZ, F_S, 8, 16, sleep=1)
    g.e("v_and_b32 v16, 7, v0")
    g.e("v_lshlrev_b32 v16, 2, v16")
    g.e("s_lshl_b32 s%d, s3, 5" % sT0)
    g.e("v_add_u32 v16, s%d, v16" % sT0)
    g.e("ds_read_b32 v17, v16 offset:%d" % ST_M)
    g.e("ds_read_b32 v18, v16 offset:%d" % ST_L)
    g.e("s_waitcnt lgkmcnt(0)")
    g.e("v_mov_b32 v19, v17")
    dpp_reduce(g, "v_max_f32", [19], [1, 2, 4])
    g.e("v_sub_f32 v17, v17, v19")
    g.e("v_mul_f32 v17, s%d, v17" % sL2E)
    g.e("v_exp_f32 v17, v17")
    g.nop(1)
    g.e("v_mul_f32 v18, v17, v18")
    dpp_reduce(g, "v_add_f32", [18], [1, 2, 4])
    tag(g, 16, 19, vT)
    tag(g, 17, 18, vT)
    tag(g, 18, 19, vT)
    g.e("v_mov_b32 v19, v17")
    g.e("s_lshl_b32 s%d, s%d, 3" % (sT0, sB))
    g.e("s_add_u32 s%d, s%d, s%d" % (sT0, sT0, sHKV))
    g.e("s_mov_b32 s%d, s%d" % (sT5, sT0))
    g.e("s_lshl_b32 s%d, s%d, 2" % (sT0, sT0))
    g.e("s_add_u32 s%d, s%d, s3" % (sT0, sT0))
    g.e("s_lshl_b32 s%d, s%d, 3" % (sT0, sT0))
    g.e("s_add_u32 s%d, s%d, s%d" % (sT0, sT0, sS))
    g.e("s_lshl_b32 s%d, s%d, 4" % (sT0, sT0))
    g.e("s_add_u32 s%d, s%d, 0x%x" % (sT0, sT0, WS_STATS))
    g.e("s_mov_b64 exec, 1")
    g.e("buffer_store_dwordx4 v[16:19], v%d, s[%d:%d], s%d offen sc1" % (vZ, dWS, dWS + 3, sT0))
    g.e("s_mov_b64 exec, -1")
    g.stamp(10)
    vOW, vPUB, vH1, vH1S, vFP = 10, 11, 6, 7, 5
    g.e("v_lshrrev_b32 v16, 5, v0")
    g.e("v_lshlrev_b32 v16, 13, v16")
    g.e("v_and_b32 v17, 31, v0")
    g.e("v_lshlrev_b32 v17, 4, v17")
    g.e("s_lshl_b32 s%d, s3, 9" % sT0)
    g.e("v_add3_u32 v%d, v16, v17, s%d" % (vOW, sT0))
    g.e("v_lshlrev_b32 v16, 1, v%d" % vC16)
    g.e("v_and_b32 v17, 16, v0")
    g.e("v_add_u32 v%d, v16, v17" % vPUB)
    sPUB, sH1, sH1S, sFP = sT1, sT2, sT3, sT4
    g.e("s_lshl_b32 s%d, s%d, 3" % (sPUB, sT5))
    g.e("s_add_u32 s%d, s%d, s%d" % (sPUB, sPUB, sS))
    g.e("s_lshl_b32 s%d, s%d, 11" % (sPUB, sPUB))
    g.e("s_lshl_b32 s%d, s3, 9" % sT0)
    g.e("s_add_u32 s%d, s%d, s%d" % (sPUB, sPUB, sT0))
    g.e("s_add_u32 s%d, s%d, 0x%x" % (sPUB, sPUB, WS_OP))
    g.e("v_bfe_u32 v16, v0, 1, 3")
    g.e("v_lshlrev_b32 v17, 11, v16")
    g.e("v_lshlrev_b32 v18, 5, v%d" % vG)
    g.e("v_and_b32 v19, 1, v0")
    g.e("v_lshlrev_b32 v19, 4, v19")
    g.e("v_add3_u32 v%d, v17, v18, v19" % vH1)
    g.e("v_lshlrev_b32 v%d, 4, v16" % vH1S)
    g.e("s_lshl_b32 s%d, s%d, 14" % (sH1, sT5))
    g.e("s_lshl_b32 s%d, s%d, 8" % (sT0, sS))
    g.e("s_add_u32 s%d, s%d, s%d" % (sH1, sH1, sT0))
    g.e("s_add_u32 s%d, s%d, 0x%x" % (sH1, sH1, WS_OP))
    g.e("s_lshl_b32 s%d, s%d, 2" % (sH1S, sT5))
    g.e("s_lshr_b32 s%d, s%d, 1" % (sT0, sS))
    g.e("s_add_u32 s%d, s%d, s%d" % (sH1S, sH1S, sT0))
    g.e("s_lshl_b32 s%d, s%d, 7" % (sH1S, sH1S))
    g.e("s_add_u32 s%d, s%d, 0x%x" % (sH1S, sH1S, WS_STATS))
    g.e("s_lshl_b32 s%d, s%d, 6" % (sFP, sB))
    g.e("s_add_u32 s%d, s%d, s%d" % (sFP, sFP, sR))
    g.e("s_lshl_b32 s%d, s%d, 11" % (sFP, sFP))
    g.e("s_lshl_b32 s%d, s3, 9" % sT0)
    g.e("s_add_u32 s%d, s%d, s%d" % (sFP, sFP, sT0))
    g.e("s_add_u32 s%d, s%d, 0x%x" % (sFP, sFP, WS_FP))
    lds_spin(g, vZ, F_O, 8, 16, sleep=0)
    g.stamp(11)
    for k in range(4):
        g.e("ds_read_b128 %s, v%d offset:%d" % (vr(16 + 4 * k, 4), vOW, OW + k * 2048))
    g.e("s_waitcnt lgkmcnt(2)")
    for k in range(4):
        g.e("v_add_f32 v%d, v%d, v%d" % (16 + k, 16 + k, 20 + k))
    g.e("s_waitcnt lgkmcnt(0)")
    for k in range(4):
        g.e("v_add_f32 v%d, v%d, v%d" % (24 + k, 24 + k, 28 + k))
    for k in range(4):
        g.e("v_add_f32 v%d, v%d, v%d" % (16 + k, 16 + k, 24 + k))
    swap_reduce(g, "v_add_f32", [16, 17, 18, 19], [20, 21, 22, 23], 32)
    for k in range(4):
        tag(g, 16 + k, 16 + k, vT)
    g.e("s_mov_b32 exec_hi, 0")
    g.e("buffer_store_dwordx4 v[16:19], v%d, s[%d:%d], s%d offen sc1" % (vPUB, dWS, dWS + 3, sPUB))
    g.e("s_mov_b64 exec, -1")
    g.stamp(12)
    O0, O1, SG = 16, 20, 24
    poll_loop(g, [
        "buffer_load_dwordx4 %s, v%d, s[%d:%d], s%d offen sc1" % (vr(O0, 4), vH1, dWS, dWS + 3, sH1),
        "buffer_load_dwordx4 %s, v%d, s[%d:%d], s%d offen offset:128 sc1" % (vr(O1, 4), vH1, dWS, dWS + 3, sH1),
        "buffer_load_dwordx4 %s, v%d, s[%d:%d], s%d offen sc1" % (vr(SG, 4), vH1S, dWS, dWS + 3, sH1S),
    ], list(range(O0, O0 + 12)), 28)
    g.stamp(13)
    g.e("v_mov_b32 v28, v%d" % SG)
    dpp_reduce(g, "v_max_f32", [28], [2, 4, 8])
    g.e("v_sub_f32 v28, v%d, v28" % SG)
    g.e("v_mul_f32 v28, s%d, v28" % sL2E)
    g.e("v_exp_f32 v28, v28")
    g.nop(1)
    g.e("v_mul_f32 v29, v28, v%d" % (SG + 1))
    dpp_reduce(g, "v_add_f32", [29], [2, 4, 8])
    g.e("v_rcp_f32 v29, v29")
    g.nop(1)
    g.e("v_mul_f32 v28, v28, v29")
    for k in range(8):
        g.e("v_mul_f32 v%d, v28, v%d" % (O0 + k, O0 + k))
    dpp_reduce(g, "v_add_f32", [O0 + k for k in range(8)], [2, 4, 8])
    A0, A1 = 24, 28
    g.e("v_cvt_pk_bf16_f32 v%d, v%d, v%d" % (A0, O0, O0 + 1))
    g.e("v_cvt_pk_bf16_f32 v%d, v%d, v%d" % (A0 + 1, O0 + 2, O0 + 3))
    g.e("v_cvt_pk_bf16_f32 v%d, v%d, v%d" % (A1, O1, O1 + 1))
    g.e("v_cvt_pk_bf16_f32 v%d, v%d, v%d" % (A1 + 1, O1 + 2, O1 + 3))
    g.nop(1)
    g.e("v_mov_b32_dpp v%d, v%d quad_perm:[1,1,3,3] row_mask:0xf bank_mask:0xf" % (A0 + 2, A0))
    g.e("v_mov_b32_dpp v%d, v%d quad_perm:[1,1,3,3] row_mask:0xf bank_mask:0xf" % (A0 + 3, A0 + 1))
    g.e("v_mov_b32_dpp v%d, v%d quad_perm:[1,1,3,3] row_mask:0xf bank_mask:0xf" % (A1 + 2, A1))
    g.e("v_mov_b32_dpp v%d, v%d quad_perm:[1,1,3,3] row_mask:0xf bank_mask:0xf" % (A1 + 3, A1 + 1))
    g.nop(2)
    for e in range(8):
        mfma(g, X + 4 * e, A0, B + 4 * e, None)
    for e in range(8):
        mfma(g, X + 4 * e, A1, P + 4 * e, X + 4 * e)
    g.nop(8)
    for k in range(4):
        g.e("v_cndmask_b32 v%d, v%d, v%d, s[%d:%d]" % (16 + k, X + 4 * k, X + 4 * (4 + k), sMASK, sMASK + 1))
    for k in range(4):
        g.e("v_fma_f32 v%d, v%d, v%d, v%d" % (16 + k, vGATE, 16 + k, FF + k))
    for k in range(4):
        tag(g, 16 + k, 16 + k, vT)
    g.e("s_mov_b32 exec_hi, 0")
    g.e("buffer_store_dwordx4 v[16:19], v%d, s[%d:%d], s%d offen sc1" % (vPUB, dWS, dWS + 3, sFP))
    g.e("s_mov_b64 exec, -1")
    g.stamp(14)
    g.e("s_and_b32 s%d, s%d, 3" % (sT0, sS))
    g.e("s_or_b32 s%d, s%d, s3" % (sT0, sT0))
    g.e("s_cmp_eq_u32 s%d, 0" % sT0)
    g.e("s_cbranch_scc0 L_AUX_END")
    g.e("s_lshl_b32 s%d, s%d, 1" % (sT1, sHKV))
    g.e("s_lshr_b32 s%d, s%d, 2" % (sT0, sS))
    g.e("s_add_u32 s%d, s%d, s%d" % (sT1, sT1, sT0))
    g.e("v_lshrrev_b32 v6, 3, v0")
    g.e("v_lshlrev_b32 v6, 11, v6")
    g.e("v_and_b32 v7, 7, v0")
    g.e("v_lshlrev_b32 v7, 4, v7")
    g.e("v_add_u32 v6, v6, v7")
    g.e("s_lshl_b32 s%d, s%d, 17" % (sT2, sB))
    g.e("s_lshl_b32 s%d, s%d, 7" % (sT0, sT1))
    g.e("s_add_u32 s%d, s%d, s%d" % (sT2, sT2, sT0))
    g.e("s_add_u32 s%d, s%d, 0x%x" % (sT2, sT2, WS_FP))
    FS = 52
    for n in range(8):
        g.e("s_add_u32 s%d, s%d, %d" % (FS + n, sT2, n * 16384))
    srd(g, dOUT, sOUT, 4096)
    R = 40
    poll_loop(g, [
        "buffer_load_dwordx4 %s, v6, s[%d:%d], s%d offen sc1" % (vr(R + 4 * n, 4), dWS, dWS + 3, FS + n) for n in range(8)
    ], list(range(R, R + 32)), 16)
    g.stamp(15)
    for step in (4, 2, 1):
        for n in range(step):
            for k in range(4):
                g.e("v_add_f32 v%d, v%d, v%d" % (R + 4 * n + k, R + 4 * n + k, R + 4 * (n + step) + k))
    regs = [R + k for k in range(4)]
    dpp_reduce(g, "v_add_f32", regs, [8])
    swap_reduce(g, "v_add_f32", regs, [R + 4 + k for k in range(4)], 16)
    swap_reduce(g, "v_add_f32", regs, [R + 4 + k for k in range(4)], 32)
    g.e("v_cvt_pk_bf16_f32 v16, v%d, v%d" % (R, R + 1))
    g.e("v_cvt_pk_bf16_f32 v17, v%d, v%d" % (R + 2, R + 3))
    g.e("v_lshlrev_b32 v7, 3, v0")
    g.e("s_lshl_b32 s%d, s%d, 10" % (sT2, sB))
    g.e("s_lshl_b32 s%d, s%d, 6" % (sT0, sT1))
    g.e("s_add_u32 s%d, s%d, s%d" % (sT2, sT2, sT0))
    g.e("s_mov_b64 exec, 0xff")
    g.e("buffer_store_dwordx2 v[16:17], v7, s[%d:%d], s%d offen" % (dOUT, dOUT + 3, sT2))
    g.e("s_mov_b64 exec, -1")
    g.e("s_waitcnt vmcnt(0)")
    g.stamp(16)
    g.lab("L_AUX_END")
    write_stamps(g)
    g.e("s_endpgm")


def gen(opt):
    g = G(opt)
    g.L.append(HEADER.rstrip("\n"))
    g.L.append("; @launch grid=(256,1,1) block=(768,1,1) lds=%d" % LDS_SIZE)
    g.L.append('.amdgcn_target "amdgcn-amd-amdhsa--gfx950"')
    g.L.append(".text")
    g.L.append(".globl %s_kernel" % NAME)
    g.L.append(".p2align 8")
    g.L.append(".type %s_kernel,@function" % NAME)
    g.L.append("%s_kernel:" % NAME)
    prologue(g)
    aux_wave(g)
    kv_wave(g)
    g.lab("L_END")
    g.e("s_endpgm")
    g.L.append('.section .rodata,"a"')
    g.L.append(".p2align 6")
    g.L.append(".amdhsa_kernel %s_kernel" % NAME)
    g.L.append("  .amdhsa_next_free_vgpr 168")
    g.L.append("  .amdhsa_next_free_sgpr 102")
    g.L.append("  .amdhsa_accum_offset 168")
    g.L.append("  .amdhsa_group_segment_fixed_size 0")
    g.L.append("  .amdhsa_kernarg_size 104")
    g.L.append("  .amdhsa_user_sgpr_count 2")
    g.L.append("  .amdhsa_user_sgpr_kernarg_segment_ptr 1")
    g.L.append("  .amdhsa_system_sgpr_workgroup_id_x 1")
    g.L.append(".end_amdhsa_kernel")
    return g.text()


def main():
    ap = argparse.ArgumentParser()
    ap.add_argument("-o", default="k.s")
    ap.add_argument("--stamps", type=int, default=0)
    ap.add_argument("--ntk", type=int, default=1)
    ap.add_argument("--ntv", type=int, default=1)
    ap.add_argument("--ntw", type=int, default=1)
    ap.add_argument("--ntwo", type=int, default=0)
    opt = ap.parse_args()
    open(opt.o, "w").write(gen(opt))


if __name__ == "__main__":
    main()
```

```python
import sys, argparse

NAME = "gated_mix__gqa_block_cached__swiglu_ffn__decode"

HEADER = """; Kernarg layout for this problem (104 bytes, ptrs only, base s[0:1]):
"""

WS_EPOCH = 0
WS_QP = 0x1000
WS_STATS = 0x80000
WS_OP = 0x90000
WS_FP = 0x110000
WS_SIZE = 0x200000
STAMP_OFF = 128 << 20

F_P0, F_Q, F_S, F_O = 0, 4, 8, 12
ST_M = 256
ST_L = 384
QL = 512
QSTR = 272
HL = 1664
P0 = 2048
OW = 10240
LDS_SIZE = 26624

LOG2E = 0x3FB8AA3B
SCALE = 0x3DB504F3


class G:
    def __init__(self, opt):
        self.L = []
        self.opt = opt
        self.nst = 0
        self.uid = 0

    def e(self, t):
        self.L.append("  " + t)

    def c(self, t):
        self.L.append("  ; " + t)

    def lab(self, n):
        self.L.append(n + ":")

    def u(self, p):
        self.uid += 1
        return "L_%s_%d" % (p, self.uid)

    def nop(self, n):
        while n > 0:
            k = min(n, 16)
            self.e("s_nop %d" % (k - 1))
            n -= k

    def stamp(self, i):
        if not self.opt.stamps:
            return
        self.e("s_memrealtime s[98:99]")
        self.e("s_waitcnt lgkmcnt(0)")
        self.e("v_writelane_b32 v39, s98, %d" % i)

    def text(self):
        return "\n".join(self.L) + "\n"


def vr(a, n=1):
    return "v%d" % a if n == 1 else "v[%d:%d]" % (a, a + n - 1)


def sr(a, n=1):
    return "s%d" % a if n == 1 else "s[%d:%d]" % (a, a + n - 1)


sWG, sWAVE = 2, 3
sX, sK, sV, sWQ, sWO, sWGT, sWU = 8, 10, 12, 14, 16, 20, 22
sWD, sGW, sOUT, sDBG, sWS = 24, 26, 28, 30, 32
sHKV, sB, sS, sR32 = 34, 35, 36, 37
sR = 38
sKW = 39
dK, dV = 40, 44
dW0, dX, dWS, dWO, dWD, dGW, dOUT, dDBG = 40, 44, 48, 52, 56, 60, 64, 68
sT, sE, sSELLO, sSELHI = 72, 73, 74, 75
sMASK = 76
sSPIN = 84
sT0, sT1, sT2, sT3, sT4, sT5 = 85, 86, 87, 88, 89, 90
sFF = 91
sL2E = 92
sO0 = 93


def srd(g, d, ptr, size):
    g.e("s_mov_b32 s%d, s%d" % (d, ptr))
    g.e("s_and_b32 s%d, s%d, 0xffff" % (d + 1, ptr + 1))
    if isinstance(size, str):
        g.e("s_mov_b32 s%d, %s" % (d + 2, size))
    else:
        g.e("s_mov_b32 s%d, 0x%x" % (d + 2, size))
    g.e("s_mov_b32 s%d, 0x20000" % (d + 3))


def lds_spin(g, addr_v, off, target, tmp, sleep=1, maxit=1 << 20):
    l = g.u("spin")
    d = g.u("spind")
    g.e("s_mov_b32 s%d, %d" % (sSPIN, maxit))
    g.lab(l)
    g.e("ds_read_b32 v%d, v%d offset:%d" % (tmp, addr_v, off))
    g.e("s_waitcnt lgkmcnt(0)")
    g.e("v_readfirstlane_b32 s%d, v%d" % (sT0, tmp))
    g.e("s_cmp_ge_u32 s%d, %d" % (sT0, target))
    g.e("s_cbranch_scc1 %s" % d)
    if sleep:
        g.e("s_sleep %d" % sleep)
    g.e("s_sub_u32 s%d, s%d, 1" % (sSPIN, sSPIN))
    g.e("s_cmp_lg_u32 s%d, 0" % sSPIN)
    g.e("s_cbranch_scc1 %s" % l)
    g.lab(d)


def check_tags(g, regs, tmp):
    for r in regs:
        g.e("v_xor_b32 v%d, s%d, v%d" % (r, sT, r))
    rs = list(regs)
    g.e("v_or3_b32 v%d, v%d, v%d, v%d" % (tmp, rs[0], rs[1], rs[2]))
    rs = rs[3:]
    while len(rs) >= 2:
        g.e("v_or3_b32 v%d, v%d, v%d, v%d" % (tmp, tmp, rs[0], rs[1]))
        rs = rs[2:]
    if rs:
        g.e("v_or_b32 v%d, v%d, v%d" % (tmp, tmp, rs[0]))
    g.e("v_and_b32 v%d, 0xff, v%d" % (tmp, tmp))
    g.e("v_cmp_ne_u32 vcc, 0, v%d" % tmp)


def poll_loop(g, loads, regs, tmp, maxit=1 << 15, sleep=0):
    l = g.u("poll")
    d = g.u("polld")
    g.e("s_mov_b32 s%d, %d" % (sSPIN, maxit))
    g.lab(l)
    for x in loads:
        g.e(x)
    g.e("s_waitcnt vmcnt(0)")
    check_tags(g, regs, tmp)
    g.e("s_cbranch_vccz %s" % d)
    if sleep:
        g.e("s_sleep %d" % sleep)
    g.e("s_sub_u32 s%d, s%d, 1" % (sSPIN, sSPIN))
    g.e("s_cmp_lg_u32 s%d, 0" % sSPIN)
    g.e("s_cbranch_scc1 %s" % l)
    g.lab(d)


def tag(g, dst, src, vT):
    g.e("v_bfi_b32 v%d, s%d, v%d, v%d" % (dst, sFF, vT, src))


def perm_block(g, raw, dst, e):
    m = e >> 1
    sel = sSELHI if (e & 1) else sSELLO
    for tp in range(4):
        g.e("v_perm_b32 v%d, v%d, v%d, s%d" % (dst + 4 * e + tp, raw + 4 * (2 * tp + 1) + m, raw + 4 * (2 * tp) + m, sel))


def transpose_tile(g, raw, dst):
    for e in range(8):
        perm_block(g, raw, dst, e)


def mfma(g, d, a, b, c):
    cs = "0" if c is None else vr(c, 4)
    g.e("v_mfma_f32_16x16x32_bf16 %s, %s, %s, %s" % (vr(d, 4), vr(a, 4), vr(b, 4), cs))


def round_bf16_pair(g, a, b, t):
    g.e("v_cvt_pk_bf16_f32 v%d, v%d, v%d" % (t, a, b))
    g.e("v_lshlrev_b32 v%d, 16, v%d" % (a, t))
    g.e("v_and_b32 v%d, 0xffff0000, v%d" % (b, t))


def swap_reduce(g, op, regs, tmps, which):
    for r, t in zip(regs, tmps):
        g.e("v_mov_b32 v%d, v%d" % (t, r))
    n = len(regs)
    if n < 3:
        g.nop(3 - n)
    else:
        g.nop(1)
    for r, t in zip(regs, tmps):
        g.e("v_permlane%d_swap_b32 v%d, v%d" % (which, r, t))
    g.nop(1)
    for r, t in zip(regs, tmps):
        g.e("%s v%d, v%d, v%d" % (op, r, r, t))


def dpp_reduce(g, op, regs, rors):
    n = len(regs)
    for ro in rors:
        if n < 3:
            g.nop(3 - n)
        for r in regs:
            g.e("%s_dpp v%d, v%d, v%d row_ror:%d row_mask:0xf bank_mask:0xf" % (op, r, r, r, ro))


def prologue(g):
    g.e("s_cmp_ge_u32 s2, 256")
    g.e("s_cbranch_scc1 L_END")
    if g.opt.stamps:
        g.e("s_memrealtime s[98:99]")
    g.e("s_load_dwordx16 s[8:23], s[0:1], 0")
    g.e("s_load_dwordx8 s[24:31], s[0:1], 64")
    g.e("s_load_dwordx2 s[32:33], s[0:1], 96")
    g.e("v_lshrrev_b32 v1, 6, v0")
    g.e("v_and_b32 v0, 63, v0")
    g.e("v_mov_b32 v2, 0")
    g.e("v_readfirstlane_b32 s3, v1")
    g.e("v_lshlrev_b32 v3, 2, v0")
    g.e("ds_write_b32 v3, v2")
    g.e("s_and_b32 s%d, s2, 7" % sHKV)
    g.e("s_lshr_b32 s%d, s2, 3" % sR32)
    g.e("s_lshr_b32 s%d, s%d, 3" % (sB, sR32))
    g.e("s_and_b32 s%d, s%d, 7" % (sS, sR32))
    g.e("s_lshl_b32 s%d, s%d, 3" % (sR, sHKV))
    g.e("s_add_u32 s%d, s%d, s%d" % (sR, sR, sS))
    g.e("s_mov_b32 s%d, 0x05040100" % sSELLO)
    g.e("s_mov_b32 s%d, 0x07060302" % sSELHI)
    g.e("s_mov_b32 s%d, 0x%x" % (sL2E, LOG2E))
    g.e("s_waitcnt lgkmcnt(0)")
    if g.opt.stamps:
        g.e("v_mov_b32 v39, 0")
        g.e("v_writelane_b32 v39, s98, 0")
    if not g.opt.early:
        g.e("s_barrier")
        g.stamp(1)
    g.e("s_cmp_ge_u32 s3, 4")
    g.e("s_cbranch_scc1 L_KV")


def write_stamps(g):
    if not g.opt.stamps:
        return
    n = g.opt.stamps
    g.e("s_mul_i32 s%d, s2, 12" % sT0)
    g.e("s_add_u32 s%d, s%d, s3" % (sT0, sT0))
    g.e("s_mul_i32 s%d, s%d, %d" % (sT0, sT0, n * 8))
    g.e("s_add_u32 s%d, s%d, 0x%x" % (sT0, sT0, STAMP_OFF))
    g.e("v_lshlrev_b32 v1, 3, v0")
    g.e("v_add_u32 v1, s%d, v1" % sT0)
    g.e("v_mov_b32 v2, v39")
    g.e("v_mov_b32 v3, 0")
    g.e("s_mov_b64 exec, 0x%x" % ((1 << n) - 1))
    g.e("global_store_dwordx2 v1, v[2:3], s[32:33]")
    g.e("s_waitcnt vmcnt(0)")


def kv_wave(g):
    o = g.opt
    KB, VB = 40, 104
    vKoff, vVoff, vZ = 1, 2, 3
    QF = 4
    S = 20
    t0, t1, t2 = 36, 37, 38
    g.lab("L_KV")
    g.e("s_sub_u32 s%d, s3, 4" % sKW)
    srd(g, dK, sK, 33554432)
    srd(g, dV, sV, 33554432)
    g.e("s_lshl_b32 s%d, s%d, 3" % (sT0, sB))
    g.e("s_add_u32 s%d, s%d, s%d" % (sT0, sT0, sHKV))
    g.e("s_lshl_b32 s%d, s%d, 20" % (sT0, sT0))
    g.e("s_lshl_b32 s%d, s%d, 17" % (sT1, sS))
    g.e("s_add_u32 s%d, s%d, s%d" % (sT0, sT0, sT1))
    g.e("s_lshl_b32 s%d, s%d, 14" % (sT1, sKW))
    g.e("s_add_u32 s%d, s%d, s%d" % (sO0, sT0, sT1))
    for T in range(1, 4):
        g.e("s_add_u32 s%d, s%d, %d" % (sO0 + T, sO0, 4096 * T))
    g.e("v_and_b32 v4, 3, v0")
    g.e("v_lshlrev_b32 v4, 10, v4")
    g.e("v_bfe_u32 v5, v0, 2, 2")
    g.e("v_lshlrev_b32 v5, 8, v5")
    g.e("v_and_b32 v6, 0x30, v0")
    g.e("v_add3_u32 v%d, v4, v5, v6" % vKoff)
    g.e("v_lshlrev_b32 v%d, 4, v0" % vVoff)
    if o.early:
        g.e("s_barrier")
        g.stamp(1)
    if o.cut == "nokv":
        write_stamps(g)
        g.e("s_endpgm")
        return
    knt = " nt" if o.ntk else ""
    vnt = " nt" if o.ntv else ""
    for T in range(4):
        for jj in range(4):
            d = KB + 16 * T + 4 * jj
            g.e("buffer_load_dwordx4 %s, v%d, s[%d:%d], s%d offen offset:%d%s" % (vr(d, 4), vKoff, dK, dK + 3, sO0 + T, jj * 64, knt))
    for n in range(2):
        for t in range(8):
            d = VB + 32 * n + 4 * t
            g.e("buffer_load_dwordx4 %s, v%d, s[%d:%d], s%d offen offset:%d%s" % (vr(d, 4), vVoff, dV, dV + 3, sO0 + 2 * n + (t >> 2), (t & 3) * 1024, vnt))
    g.stamp(2)
    if o.cut:
        g.e("s_waitcnt vmcnt(16)")
        g.stamp(4)
        g.e("s_waitcnt vmcnt(0)")
        g.stamp(8)
        write_stamps(g)
        g.e("s_endpgm")
        return
    g.e("v_mov_b32 v%d, 0" % vZ)
    g.e("v_bfe_u32 v5, v0, 2, 2")
    g.e("v_mul_u32_u24 v5, %d, v5" % QSTR)
    g.e("v_and_b32 v6, 0x30, v0")
    g.e("v_add_u32 v%d, v5, v6" % vKoff)
    lds_spin(g, vZ, F_Q, 4, t0, sleep=2)
    g.stamp(3)
    for jj in range(4):
        g.e("ds_read_b128 %s, v%d offset:%d" % (vr(QF + 4 * jj, 4), vKoff, QL + 64 * jj))
    g.e("s_waitcnt lgkmcnt(0)")
    for T in range(4):
        g.e("s_waitcnt vmcnt(%d)" % (16 + 4 * (3 - T)))
        for jj in range(4):
            mfma(g, S + 4 * T, KB + 16 * T + 4 * jj, QF + 4 * jj, None if jj == 0 else S + 4 * T)
    g.stamp(4)
    g.nop(8)
    for p in range(8):
        a, b = S + 2 * p, S + 2 * p + 1
        round_bf16_pair(g, a, b, t0 + (p & 1))
    for r in range(16):
        g.e("v_mul_f32 v%d, 0x%x, v%d" % (S + r, SCALE, S + r))
    for p in range(8):
        a, b = S + 2 * p, S + 2 * p + 1
        round_bf16_pair(g, a, b, t0 + (p & 1))
    vM = 4
    vL = 5
    g.e("v_max3_f32 v%d, v%d, v%d, v%d" % (vM, S, S + 1, S + 2))
    g.e("v_max3_f32 v%d, v%d, v%d, v%d" % (6, S + 3, S + 4, S + 5))
    g.e("v_max3_f32 v%d, v%d, v%d, v%d" % (7, S + 6, S + 7, S + 8))
    g.e("v_max3_f32 v%d, v%d, v%d, v%d" % (8, S + 9, S + 10, S + 11))
    g.e("v_max3_f32 v%d, v%d, v%d, v%d" % (9, S + 12, S + 13, S + 14))
    g.e("v_max3_f32 v%d, v%d, v%d, v%d" % (vM, vM, 6, 7))
    g.e("v_max3_f32 v%d, v%d, v%d, v%d" % (8, 8, 9, S + 15))
    g.e("v_max_f32 v%d, v%d, v%d" % (vM, vM, 8))
    swap_reduce(g, "v_max_f32", [vM], [6], 16)
    swap_reduce(g, "v_max_f32", [vM], [6], 32)
    g.e("v_mul_f32 v6, s%d, v%d" % (sL2E, vM))
    for r in range(16):
        g.e("v_fma_f32 v%d, v%d, s%d, -v6" % (S + r, S + r, sL2E))
    for r in range(16):
        g.e("v_exp_f32 v%d, v%d" % (S + r, S + r))
    g.nop(1)
    g.e("v_add_f32 v%d, v%d, v%d" % (vL, S, S + 1))
    g.e("v_add_f32 v7, v%d, v%d" % (S + 2, S + 3))
    for r in range(4, 16, 2):
        g.e("v_add_f32 v%d, v%d, v%d" % (vL, vL, S + r))
        g.e("v_add_f32 v7, v7, v%d" % (S + r + 1))
    g.e("v_add_f32 v%d, v%d, v7" % (vL, vL))
    PF = 8
    for p in range(8):
        g.e("v_cvt_pk_bf16_f32 v%d, v%d, v%d" % (PF + p, S + 2 * p, S + 2 * p + 1))
    swap_reduce(g, "v_add_f32", [vL], [6], 16)
    swap_reduce(g, "v_add_f32", [vL], [6], 32)
    g.e("v_lshlrev_b32 v6, 3, v0")
    g.e("s_lshl_b32 s%d, s%d, 2" % (sT0, sKW))
    g.e("v_add_u32 v6, s%d, v6" % sT0)
    g.e("v_mov_b32 v7, 1")
    g.e("s_mov_b64 exec, 0x1111")
    g.e("ds_write_b32 v6, v%d offset:%d" % (vM, ST_M))
    g.e("ds_write_b32 v6, v%d offset:%d" % (vL, ST_L))
    g.e("s_mov_b64 exec, 1")
    g.e("ds_add_u32 v%d, v7 offset:%d" % (vZ, F_S))
    g.e("s_mov_b64 exec, -1")
    g.stamp(5)
    PB, ACC = 40, 72

    def pv_tile(n, last):
        raw = VB + 32 * n
        if not last:
            g.e("s_waitcnt vmcnt(8)")
            for e in range(8):
                perm_block(g, raw, PB, e)
                if e >= 1:
                    mfma(g, ACC + 4 * (e - 1), PF + 4 * n, PB + 4 * (e - 1), None if n == 0 else ACC + 4 * (e - 1))
            g.nop(2)
            mfma(g, ACC + 28, PF + 4 * n, PB + 28, None if n == 0 else ACC + 28)
        else:
            for tp in range(4):
                g.e("s_waitcnt vmcnt(%d)" % (6 - 2 * tp))
                for e in range(8):
                    m = e >> 1
                    sel = sSELHI if (e & 1) else sSELLO
                    g.e("v_perm_b32 v%d, v%d, v%d, s%d" % (PB + 4 * e + tp, raw + 4 * (2 * tp + 1) + m, raw + 4 * (2 * tp) + m, sel))
            g.nop(2)
            for e in range(8):
                mfma(g, ACC + 4 * e, PF + 4 * n, PB + 4 * e, None if n == 0 else ACC + 4 * e)

    pv_tile(0, False)
    g.stamp(6)
    lds_spin(g, vZ, F_S, 8, t0, sleep=1)
    g.e("v_lshrrev_b32 v6, 4, v0")
    g.e("v_lshlrev_b32 v6, 5, v6")
    g.e("ds_read_b128 v[16:19], v6 offset:%d" % ST_M)
    g.e("ds_read_b128 v[20:23], v6 offset:%d" % (ST_M + 16))
    g.e("s_lshl_b32 s%d, s%d, 2" % (sT0, sKW))
    g.e("v_add_u32 v7, s%d, v6" % sT0)
    g.e("ds_read_b32 v24, v7 offset:%d" % ST_M)
    g.e("s_waitcnt lgkmcnt(0)")
    g.e("v_max3_f32 v16, v16, v17, v18")
    g.e("v_max3_f32 v19, v19, v20, v21")
    g.e("v_max3_f32 v16, v16, v22, v23")
    g.e("v_max_f32 v16, v16, v19")
    g.e("v_sub_f32 v24, v24, v16")
    g.e("v_mul_f32 v24, s%d, v24" % sL2E)
    g.e("v_exp_f32 v24, v24")
    g.e("v_lshrrev_b32 v6, 4, v0")
    g.e("v_lshlrev_b32 v6, 9, v6")
    g.e("v_and_b32 v7, 15, v0")
    g.e("v_lshlrev_b32 v7, 4, v7")
    g.e("s_lshl_b32 s%d, s%d, 11" % (sT0, sKW))
    g.e("v_add3_u32 v6, v6, v7, s%d" % sT0)
    g.e("v_mov_b32 v7, 1")
    g.stamp(7)
    pv_tile(1, True)
    g.nop(8)
    for e in range(8):
        g.e("v_mul_f32 v%d, v24, v%d" % (16 + e, ACC + 4 * e))
    g.e("ds_write_b128 v6, v[16:19] offset:%d" % OW)
    g.e("ds_write_b128 v6, v[20:23] offset:%d" % (OW + 256))
    g.e("s_mov_b64 exec, 1")
    g.e("ds_add_u32 v%d, v7 offset:%d" % (vZ, F_O))
    g.e("s_mov_b64 exec, -1")
    g.e("s_waitcnt lgkmcnt(0)")
    g.stamp(8)
    write_stamps(g)
    g.e("s_endpgm")


def aux_wave(g):
    o = g.opt
    P, X, A, B = 40, 72, 104, 136
    vZ = 1
    vT = 2
    vC16 = 3
    vG = 4
    vW = 5
    wnt = " nt" if o.ntw else ""
    g.lab("L_AUX")
    if o.cut == "kv":
        write_stamps(g)
        g.e("s_endpgm")
        return
    if o.prio:
        g.e("s_setprio 3")
    g.e("s_load_dword s%d, s[%d:%d], %d" % (sE, sWS, sWS + 1, WS_EPOCH))
    srd(g, dX, sX, 4096)
    srd(g, dWS, sWS, WS_SIZE)
    g.e("v_mov_b32 v%d, 0" % vZ)
    g.e("v_and_b32 v%d, 15, v0" % vC16)
    g.e("v_lshlrev_b32 v%d, 4, v%d" % (vC16, vC16))
    g.e("v_lshrrev_b32 v%d, 4, v0" % vG)
    g.e("s_mov_b32 s%d, 0xff" % sFF)
    sStr, sOff, sUnit, sRg = sT1, sT2, sT3, sT4
    g.e("s_cmp_lt_u32 s%d, 16" % sR32)
    g.e("s_cbranch_scc0 L_P0_FFN")
    srd(g, dW0, sWQ, 4194304)
    g.e("s_mov_b32 s%d, 8192" % sStr)
    g.e("s_and_b32 s%d, s%d, 3" % (sT0, sR32))
    g.e("s_lshl_b32 s%d, s%d, 2" % (sT5, sHKV))
    g.e("s_add_u32 s%d, s%d, s%d" % (sT0, sT0, sT5))
    g.e("s_lshr_b32 s%d, s%d, 2" % (sRg, sR32))
    g.e("s_lshl_b32 s%d, s%d, 2" % (sUnit, sT0))
    g.e("s_add_u32 s%d, s%d, s%d" % (sUnit, sUnit, sRg))
    g.e("s_lshl_b32 s%d, s%d, 8" % (sOff, sT0))
    g.e("s_branch L_P0_GO")
    g.lab("L_P0_FFN")
    g.e("s_sub_u32 s%d, s%d, 16" % (sT0, sR32))
    g.e("s_lshl_b32 s%d, s%d, 3" % (sT0, sT0))
    g.e("s_add_u32 s%d, s%d, s%d" % (sT0, sT0, sHKV))
    g.e("s_cmp_ge_u32 s%d, 112" % sT0)
    g.e("s_cbranch_scc1 %s" % ("L_P0_SKIP" if o.early else "L_P0_DONE"))
    g.e("s_add_u32 s%d, s%d, 128" % (sUnit, sT0))
    g.e("s_mov_b32 s%d, 3584" % sStr)
    g.e("s_cmp_ge_u32 s%d, 56" % sT0)
    g.e("s_cbranch_scc1 L_P0_UP")
    srd(g, dW0, sWGT, 1835008)
    g.e("s_branch L_P0_FFN2")
    g.lab("L_P0_UP")
    srd(g, dW0, sWU, 1835008)
    g.e("s_sub_u32 s%d, s%d, 56" % (sT0, sT0))
    g.lab("L_P0_FFN2")
    g.e("s_and_b32 s%d, s%d, 3" % (sRg, sT0))
    g.e("s_lshr_b32 s%d, s%d, 2" % (sT0, sT0))
    g.e("s_lshl_b32 s%d, s%d, 8" % (sOff, sT0))
    g.lab("L_P0_GO")
    g.e("s_lshl_b32 s%d, s%d, 7" % (sRg, sRg))
    g.e("s_lshl_b32 s%d, s3, 5" % sT0)
    g.e("s_add_u32 s%d, s%d, s%d" % (sRg, sRg, sT0))
    g.e("s_mul_i32 s%d, s%d, s%d" % (sT0, sRg, sStr))
    g.e("s_add_u32 s%d, s%d, s%d" % (sOff, sOff, sT0))
    g.e("s_lshl_b32 s%d, s%d, 1" % (sRg, sRg))
    g.e("v_bfe_u32 v6, v0, 2, 2")
    g.e("v_lshlrev_b32 v6, 10, v6")
    g.e("v_and_b32 v7, 0x30, v0")
    g.e("v_add_u32 v6, v6, v7")
    XF = 8
    g.e("buffer_load_dwordx4 %s, v6, s[%d:%d], s%d offen" % (vr(XF, 4), dX, dX + 3, sRg))
    g.e("v_lshlrev_b32 v7, 3, v%d" % vG)
    g.e("v_mad_u32_u24 v%d, v7, s%d, v%d" % (vW, sStr, vC16))
    for t in range(8):
        g.e("buffer_load_dwordx4 %s, v%d, s[%d:%d], s%d offen%s" % (vr(P + 4 * t, 4), vW, dW0, dW0 + 3, sOff, wnt))
        if t < 7:
            g.e("s_add_u32 s%d, s%d, s%d" % (sOff, sOff, sStr))
    if o.early:
        g.e("s_barrier")
        g.stamp(1)
    for u in range(4):
        m = (0x1111111111111111 << u) & 0xFFFFFFFFFFFFFFFF
        g.e("s_mov_b32 s%d, 0x%x" % (sMASK + 2 * u, m & 0xFFFFFFFF))
        g.e("s_mov_b32 s%d, 0x%x" % (sMASK + 2 * u + 1, m >> 32))
    g.e("s_waitcnt vmcnt(8)")
    for u in range(4):
        for k in range(4):
            g.e("v_cndmask_b32 v%d, 0, v%d, s[%d:%d]" % (A + 4 * u + k, XF + k, sMASK + 2 * u, sMASK + 2 * u + 1))
    g.stamp(2)
    g.e("s_waitcnt vmcnt(0)")
    g.stamp(3)
    D0 = 20
    order = [0, 4, 1, 5, 2, 6, 3, 7]
    for i, e in enumerate(order):
        perm_block(g, P, X, e)
        if i >= 1:
            pe = order[i - 1]
            mfma(g, D0 + 4 * (pe >> 2), A + 4 * (pe & 3), X + 4 * pe, None if (pe & 3) == 0 else D0 + 4 * (pe >> 2))
    g.nop(2)
    mfma(g, D0 + 4, A + 12, X + 28, D0 + 4)
    g.e("v_lshlrev_b32 v6, 9, v%d" % vG)
    g.e("s_lshl_b32 s%d, s3, 11" % sT0)
    g.e("v_add3_u32 v6, v6, v%d, s%d" % (vC16, sT0))
    g.e("v_mov_b32 v7, 1")
    g.nop(6)
    g.e("ds_write_b128 v6, %s offset:%d" % (vr(D0, 4), P0))
    g.e("ds_write_b128 v6, %s offset:%d" % (vr(D0 + 4, 4), P0 + 256))
    g.e("s_mov_b64 exec, 1")
    g.e("ds_add_rtn_u32 v8, v%d, v7 offset:%d" % (vZ, F_P0))
    g.e("s_mov_b64 exec, -1")
    g.e("s_waitcnt lgkmcnt(0)")
    g.e("v_readfirstlane_b32 s%d, v8" % sT0)
    g.e("s_add_u32 s%d, s%d, 1" % (sT, sE))
    g.e("s_and_b32 s%d, s%d, 0xff" % (sT, sT))
    g.e("s_cmp_eq_u32 s%d, 3" % sT0)
    g.e("s_cbranch_scc0 L_P0_DONE")
    g.e("v_mov_b32 v%d, s%d" % (vT, sT))
    g.e("v_lshlrev_b32 v6, 4, v0")
    for n in range(2):
        for w in range(4):
            g.e("ds_read_b128 %s, v6 offset:%d" % (vr(P + 16 * n + 4 * w, 4), P0 + w * 2048 + n * 1024))
    g.e("v_lshrrev_b32 v6, 5, v0")
    g.e("v_lshlrev_b32 v6, 9, v6")
    g.e("v_lshlrev_b32 v7, 1, v%d" % vC16)
    g.e("v_and_b32 v8, 16, v0")
    g.e("v_add3_u32 v6, v6, v7, v8")
    g.e("s_lshl_b32 s%d, s%d, 11" % (sT0, sUnit))
    g.e("s_add_u32 s%d, s%d, 0x%x" % (sT0, sT0, WS_QP))
    g.e("s_waitcnt lgkmcnt(0)")
    for n in range(2):
        b = P + 16 * n
        for k in range(4):
            g.e("v_add_f32 v%d, v%d, v%d" % (b + k, b + k, b + 4 + k))
            g.e("v_add_f32 v%d, v%d, v%d" % (b + 8 + k, b + 8 + k, b + 12 + k))
        for k in range(4):
            g.e("v_add_f32 v%d, v%d, v%d" % (b + k, b + k, b + 8 + k))
        for k in range(4):
            tag(g, b + k, b + k, vT)
        g.e("buffer_store_dwordx4 %s, v6, s[%d:%d], s%d offen offset:%d sc1" % (vr(b, 4), dWS, dWS + 3, sT0, n * 1024))
    if o.early:
        g.e("s_branch L_P0_DONE")
        g.lab("L_P0_SKIP")
        g.e("s_barrier")
    g.lab("L_P0_DONE")
    g.e("s_waitcnt lgkmcnt(0)")
    g.e("s_add_u32 s%d, s%d, 1" % (sT, sE))
    g.e("s_and_b32 s%d, s%d, 0xff" % (sT, sT))
    g.e("v_mov_b32 v%d, s%d" % (vT, sT))
    g.stamp(4)
    if o.cut in ("p0", "nokv"):
        write_stamps(g)
        g.e("s_endpgm")
        return
    srd(g, dDBG, sDBG, 256)
    g.e("s_cmp_eq_u32 s3, 3")
    g.e("s_cbranch_scc0 L_NOCNT")
    g.e("v_mov_b32 v7, 1")
    g.e("s_mov_b64 exec, 1")
    g.e("buffer_atomic_add v7, v%d, s[%d:%d], 0 offen sc1" % (vZ, dDBG, dDBG + 3))
    g.e("s_mov_b64 exec, -1")
    g.lab("L_NOCNT")
    srd(g, dGW, sGW, 1024)
    g.e("v_lshlrev_b32 v6, 4, v0")
    g.e("s_lshl_b32 s%d, s%d, 10" % (sT0, sB))
    GX, GWv = 8, 12
    g.e("buffer_load_dwordx4 %s, v6, s[%d:%d], s%d offen" % (vr(GX, 4), dX, dX + 3, sT0))
    g.e("buffer_load_dwordx4 %s, v6, s[%d:%d], 0 offen" % (vr(GWv, 4), dGW, dGW + 3))
    vQ, vF = 6, 7
    g.e("v_lshrrev_b32 v16, 5, v0")
    g.e("v_lshlrev_b32 v16, 11, v16")
    g.e("v_and_b32 v17, 31, v0")
    g.e("v_lshlrev_b32 v17, 4, v17")
    g.e("v_add_u32 v%d, v16, v17" % vQ)
    g.e("s_lshl_b32 s%d, s%d, 2" % (sT1, sHKV))
    g.e("s_add_u32 s%d, s%d, s3" % (sT1, sT1))
    g.e("s_lshl_b32 s%d, s%d, 13" % (sT1, sT1))
    g.e("s_lshl_b32 s%d, s%d, 9" % (sT2, sB))
    g.e("s_add_u32 s%d, s%d, s%d" % (sT1, sT1, sT2))
    g.e("s_add_u32 s%d, s%d, 0x%x" % (sT1, sT1, WS_QP))
    g.e("s_add_u32 s%d, s%d, 4096" % (sT2, sT1))
    g.e("v_and_b32 v16, 7, v0")
    g.e("v_min_u32 v16, 6, v16")
    g.e("v_lshlrev_b32 v16, 2, v16")
    g.e("s_mul_i32 s%d, s%d, 28" % (sT3, sR))
    g.e("v_add_u32 v16, s%d, v16" % sT3)
    g.e("v_lshrrev_b32 v17, 7, v16")
    g.e("v_and_b32 v16, 127, v16")
    g.e("v_lshlrev_b32 v16, 2, v16")
    g.e("v_lshlrev_b32 v17, 2, v17")
    g.e("v_bfe_u32 v18, v0, 3, 2")
    g.e("v_add_u32 v17, v17, v18")
    g.e("v_lshrrev_b32 v18, 5, v0")
    g.e("v_mul_u32_u24 v18, 56, v18")
    g.e("v_add_u32 v17, v17, v18")
    g.e("v_lshlrev_b32 v17, 11, v17")
    g.e("v_add_u32 v%d, v16, v17" % vF)
    g.e("s_lshl_b32 s%d, s%d, 9" % (sT3, sB))
    g.e("s_add_u32 s%d, s%d, 0x%x" % (sT3, sT3, WS_QP + 128 * 2048))
    Q0, Q1, F0 = 16, 20, 24
    poll_loop(g, [
        "buffer_load_dwordx4 %s, v%d, s[%d:%d], s%d offen sc1" % (vr(Q0, 4), vQ, dWS, dWS + 3, sT1),
        "buffer_load_dwordx4 %s, v%d, s[%d:%d], s%d offen sc1" % (vr(Q1, 4), vQ, dWS, dWS + 3, sT2),
        "buffer_load_dwordx4 %s, v%d, s[%d:%d], s%d offen sc1" % (vr(F0, 4), vF, dWS, dWS + 3, sT3),
    ], list(range(Q0, Q0 + 12)), 28, sleep=o.qsleep)
    g.stamp(5)
    if o.cut == "q":
        write_stamps(g)
        g.e("s_endpgm")
        return
    for k in range(4):
        g.e("v_add_f32 v%d, v%d, v%d" % (Q0 + k, Q0 + k, Q1 + k))
    swap_reduce(g, "v_add_f32", [Q0 + k for k in range(4)], [Q1 + k for k in range(4)], 32)
    g.e("v_cvt_pk_bf16_f32 v%d, v%d, v%d" % (Q0, Q0, Q0 + 1))
    g.e("v_cvt_pk_bf16_f32 v%d, v%d, v%d" % (Q0 + 1, Q0 + 2, Q0 + 3))
    g.e("v_and_b32 v28, 31, v0")
    g.e("v_lshlrev_b32 v28, 3, v28")
    g.e("s_mul_i32 s%d, s3, %d" % (sT0, QSTR))
    g.e("v_add_u32 v28, s%d, v28" % sT0)
    g.e("v_mov_b32 v29, 1")
    g.e("s_mov_b32 exec_hi, 0")
    g.e("ds_write_b64 v28, %s offset:%d" % (vr(Q0, 2), QL))
    g.e("s_mov_b64 exec, 1")
    g.e("ds_add_u32 v%d, v29 offset:%d" % (vZ, F_Q))
    g.e("s_mov_b64 exec, -1")
    srd(g, dWO, sWO, 4194304)
    srd(g, dWD, sWD, 1835008)
    g.e("v_lshlrev_b32 v%d, 13, v%d" % (vW, vG))
    g.e("s_lshl_b32 s%d, s3, 8" % sT0)
    g.e("v_add3_u32 v%d, v%d, v%d, s%d" % (vW, vW, vC16, sT0))
    vW2 = 28
    g.e("v_mov_b32 v29, 0x40000000")
    g.e("v_cmp_eq_u32 vcc, 3, v%d" % vG)
    g.nop(1)
    g.e("v_cndmask_b32 v%d, v%d, v29, vcc" % (vW2, vW))
    g.e("s_mul_i32 s%d, s%d, %d" % (sT0, sR, 28 * 1024))
    g.e("s_add_u32 s%d, s%d, 4096" % (sT1, sT0))
    wont = " nt" if o.ntwo else ""
    for t in range(8):
        g.e("buffer_load_dwordx4 %s, v%d, s[%d:%d], s%d offen offset:%d%s" % (vr(B + 4 * t, 4), vW if t < 4 else vW2, dWD, dWD + 3, sT0 if t < 4 else sT1, (t & 3) * 1024, wont))
    g.e("s_lshl_b32 s%d, s%d, 16" % (sT0, sR))
    for n in range(2):
        dst = P if n == 0 else A
        for t in range(8):
            if t == 0 or t == 4:
                g.e("s_add_u32 s%d, s%d, %d" % (sT1, sT0, n * 32768 + (t >> 2) * 4096))
            g.e("buffer_load_dwordx4 %s, v%d, s[%d:%d], s%d offen offset:%d%s" % (vr(dst + 4 * t, 4), vW, dWO, dWO + 3, sT1, (t & 3) * 1024, wont))
    g.stamp(6)
    Fr = [F0 + k for k in range(4)]
    dpp_reduce(g, "v_add_f32", Fr, [8])
    swap_reduce(g, "v_add_f32", Fr, [16, 17, 18, 19], 16)
    round_bf16_pair(g, F0, F0 + 1, 16)
    round_bf16_pair(g, F0 + 2, F0 + 3, 17)
    for k in range(4):
        g.e("v_mul_f32 v%d, s%d, v%d" % (16 + k, sL2E, F0 + k))
    for k in range(4):
        g.e("v_exp_f32 v%d, -v%d" % (16 + k, 16 + k))
    g.nop(1)
    for k in range(4):
        g.e("v_add_f32 v%d, 1.0, v%d" % (16 + k, 16 + k))
    for k in range(4):
        g.e("v_rcp_f32 v%d, v%d" % (16 + k, 16 + k))
    g.nop(1)
    for k in range(4):
        g.e("v_mul_f32 v%d, v%d, v%d" % (16 + k, 16 + k, F0 + k))
    round_bf16_pair(g, 16, 17, 20)
    round_bf16_pair(g, 18, 19, 21)
    for k in range(4):
        g.e("v_mov_b32 v%d, v%d" % (20 + k, F0 + k))
    g.nop(1)
    for k in range(4):
        g.e("v_permlane32_swap_b32 v%d, v%d" % (F0 + k, 20 + k))
    g.nop(1)
    for k in range(4):
        g.e("v_mul_f32 v%d, v%d, v%d" % (16 + k, 16 + k, 20 + k))
    g.e("v_cvt_pk_bf16_f32 v16, v16, v17")
    g.e("v_cvt_pk_bf16_f32 v17, v18, v19")
    g.e("v_cmp_eq_u32 vcc, 7, v0")
    g.nop(1)
    g.e("v_cndmask_b32 v16, v16, v%d, vcc" % vZ)
    g.e("v_cndmask_b32 v17, v17, v%d, vcc" % vZ)
    g.e("v_lshlrev_b32 v18, 3, v0")
    g.e("s_lshl_b32 s%d, s3, 6" % sT0)
    g.e("v_add_u32 v18, s%d, v18" % sT0)
    g.e("s_mov_b64 exec, 0xff")
    g.e("ds_write_b64 v18, v[16:17] offset:%d" % HL)
    g.e("s_mov_b64 exec, -1")
    g.e("v_lshlrev_b32 v18, 4, v%d" % vG)
    g.e("v_add_u32 v18, s%d, v18" % sT0)
    HF = 20
    g.e("ds_read_b128 %s, v18 offset:%d" % (vr(HF, 4), HL))
    for k in range(4):
        g.e("v_lshlrev_b32 v%d, 16, v%d" % (28 + 0, GX + k))
        g.e("v_and_b32 v%d, 0xffff0000, v%d" % (29, GX + k))
        g.e("v_lshlrev_b32 v%d, 16, v%d" % (30, GWv + k))
        g.e("v_and_b32 v%d, 0xffff0000, v%d" % (31, GWv + k))
        g.e("v_mul_f32 v28, v28, v30")
        g.e("v_mul_f32 v29, v29, v31")
        round_bf16_pair(g, 28, 29, 30)
        if k == 0:
            g.e("v_add_f32 v16, v28, v29")
        else:
            g.e("v_add_f32 v28, v28, v29")
            g.e("v_add_f32 v16, v16, v28")
    dpp_reduce(g, "v_add_f32", [16], [8, 4, 2, 1])
    swap_reduce(g, "v_add_f32", [16], [17], 16)
    swap_reduce(g, "v_add_f32", [16], [17], 32)
    g.e("v_cvt_pk_bf16_f32 v16, v16, v16")
    g.e("v_lshlrev_b32 v16, 16, v16")
    g.e("v_mul_f32 v16, s%d, v16" % sL2E)
    g.e("v_exp_f32 v16, -v16")
    g.nop(1)
    g.e("v_add_f32 v16, 1.0, v16")
    g.e("v_rcp_f32 v16, v16")
    g.nop(1)
    vGATE, vGM = 8, 9
    g.e("v_cvt_pk_bf16_f32 v16, v16, v16")
    g.e("v_lshlrev_b32 v%d, 16, v16" % vGATE)
    g.e("v_sub_f32 v16, 1.0, v%d" % vGATE)
    g.e("v_cvt_pk_bf16_f32 v16, v16, v16")
    g.e("v_lshlrev_b32 v%d, 16, v16" % vGM)
    g.stamp(7)
    g.e("s_cmp_eq_u32 s2, 0")
    g.e("s_cbranch_scc0 L_NOBUMP")
    g.e("s_cmp_eq_u32 s3, 3")
    g.e("s_cbranch_scc0 L_NOBUMP")
    g.e("s_mov_b32 s%d, %d" % (sSPIN, 1 << 15))
    g.lab("L_BUMP")
    g.e("buffer_load_dword v16, v%d, s[%d:%d], 0 offen sc1" % (vZ, dDBG, dDBG + 3))
    g.e("s_waitcnt vmcnt(0)")
    g.e("v_readfirstlane_b32 s%d, v16" % sT0)
    g.e("s_cmp_ge_u32 s%d, 256" % sT0)
    g.e("s_cbranch_scc1 L_BUMP2")
    g.e("s_sleep 8")
    g.e("s_sub_u32 s%d, s%d, 1" % (sSPIN, sSPIN))
    g.e("s_cmp_lg_u32 s%d, 0" % sSPIN)
    g.e("s_cbranch_scc1 L_BUMP")
    g.lab("L_BUMP2")
    g.e("s_add_u32 s%d, s%d, 1" % (sT0, sE))
    g.e("v_mov_b32 v16, s%d" % sT0)
    g.e("s_mov_b64 exec, 1")
    g.e("buffer_store_dword v16, v%d, s[%d:%d], 0 offen offset:%d sc1" % (vZ, dWS, dWS + 3, WS_EPOCH))
    g.e("s_mov_b64 exec, -1")
    g.lab("L_NOBUMP")
    g.e("s_waitcnt vmcnt(0) lgkmcnt(0)")
    g.stamp(8)
    transpose_tile(g, B, X)
    transpose_tile(g, P, B)
    transpose_tile(g, A, P)
    for e in range(8):
        mfma(g, A + 4 * e, HF, X + 4 * e, None)
    g.e("s_mov_b32 s%d, 0xffff0000" % sMASK)
    g.e("s_mov_b32 s%d, 0xffff0000" % (sMASK + 1))
    g.nop(8)
    FF = 12
    for k in range(4):
        g.e("v_cndmask_b32 v%d, v%d, v%d, s[%d:%d]" % (FF + k, A + 4 * k, A + 4 * (4 + k), sMASK, sMASK + 1))
    for k in range(4):
        g.e("v_mul_f32 v%d, v%d, v%d" % (FF + k, vGM, FF + k))
    g.stamp(9)
    lds_spin(g, vZ, F_S, 8, 16, sleep=1)
    g.e("v_and_b32 v16, 7, v0")
    g.e("v_lshlrev_b32 v16, 2, v16")
    g.e("s_lshl_b32 s%d, s3, 5" % sT0)
    g.e("v_add_u32 v16, s%d, v16" % sT0)
    g.e("ds_read_b32 v17, v16 offset:%d" % ST_M)
    g.e("ds_read_b32 v18, v16 offset:%d" % ST_L)
    g.e("s_waitcnt lgkmcnt(0)")
    g.e("v_mov_b32 v19, v17")
    dpp_reduce(g, "v_max_f32", [19], [1, 2, 4])
    g.e("v_sub_f32 v17, v17, v19")
    g.e("v_mul_f32 v17, s%d, v17" % sL2E)
    g.e("v_exp_f32 v17, v17")
    g.nop(1)
    g.e("v_mul_f32 v18, v17, v18")
    dpp_reduce(g, "v_add_f32", [18], [1, 2, 4])
    tag(g, 16, 19, vT)
    tag(g, 17, 18, vT)
    tag(g, 18, 19, vT)
    g.e("v_mov_b32 v19, v17")
    g.e("s_lshl_b32 s%d, s%d, 3" % (sT0, sB))
    g.e("s_add_u32 s%d, s%d, s%d" % (sT0, sT0, sHKV))
    g.e("s_mov_b32 s%d, s%d" % (sT5, sT0))
    g.e("s_lshl_b32 s%d, s%d, 2" % (sT0, sT0))
    g.e("s_add_u32 s%d, s%d, s3" % (sT0, sT0))
    g.e("s_lshl_b32 s%d, s%d, 3" % (sT0, sT0))
    g.e("s_add_u32 s%d, s%d, s%d" % (sT0, sT0, sS))
    g.e("s_lshl_b32 s%d, s%d, 4" % (sT0, sT0))
    g.e("s_add_u32 s%d, s%d, 0x%x" % (sT0, sT0, WS_STATS))
    g.e("s_mov_b64 exec, 1")
    g.e("buffer_store_dwordx4 v[16:19], v%d, s[%d:%d], s%d offen sc1" % (vZ, dWS, dWS + 3, sT0))
    g.e("s_mov_b64 exec, -1")
    g.stamp(10)
    vOW, vPUB, vH1, vH1S, vFP = 10, 11, 6, 7, 5
    g.e("v_lshrrev_b32 v16, 5, v0")
    g.e("v_lshlrev_b32 v16, 13, v16")
    g.e("v_and_b32 v17, 31, v0")
    g.e("v_lshlrev_b32 v17, 4, v17")
    g.e("s_lshl_b32 s%d, s3, 9" % sT0)
    g.e("v_add3_u32 v%d, v16, v17, s%d" % (vOW, sT0))
    g.e("v_lshlrev_b32 v16, 1, v%d" % vC16)
    g.e("v_and_b32 v17, 16, v0")
    g.e("v_add_u32 v%d, v16, v17" % vPUB)
    sPUB, sH1, sH1S, sFP = sT1, sT2, sT3, sT4
    g.e("s_lshl_b32 s%d, s%d, 3" % (sPUB, sT5))
    g.e("s_add_u32 s%d, s%d, s%d" % (sPUB, sPUB, sS))
    g.e("s_lshl_b32 s%d, s%d, 11" % (sPUB, sPUB))
    g.e("s_lshl_b32 s%d, s3, 9" % sT0)
    g.e("s_add_u32 s%d, s%d, s%d" % (sPUB, sPUB, sT0))
    g.e("s_add_u32 s%d, s%d, 0x%x" % (sPUB, sPUB, WS_OP))
    g.e("v_bfe_u32 v16, v0, 1, 3")
    g.e("v_lshlrev_b32 v17, 11, v16")
    g.e("v_lshlrev_b32 v18, 5, v%d" % vG)
    g.e("v_and_b32 v19, 1, v0")
    g.e("v_lshlrev_b32 v19, 4, v19")
    g.e("v_add3_u32 v%d, v17, v18, v19" % vH1)
    g.e("v_lshlrev_b32 v%d, 4, v16" % vH1S)
    g.e("s_lshl_b32 s%d, s%d, 14" % (sH1, sT5))
    g.e("s_lshl_b32 s%d, s%d, 8" % (sT0, sS))
    g.e("s_add_u32 s%d, s%d, s%d" % (sH1, sH1, sT0))
    g.e("s_add_u32 s%d, s%d, 0x%x" % (sH1, sH1, WS_OP))
    g.e("s_lshl_b32 s%d, s%d, 2" % (sH1S, sT5))
    g.e("s_lshr_b32 s%d, s%d, 1" % (sT0, sS))
    g.e("s_add_u32 s%d, s%d, s%d" % (sH1S, sH1S, sT0))
    g.e("s_lshl_b32 s%d, s%d, 7" % (sH1S, sH1S))
    g.e("s_add_u32 s%d, s%d, 0x%x" % (sH1S, sH1S, WS_STATS))
    g.e("s_lshl_b32 s%d, s%d, 6" % (sFP, sB))
    g.e("s_add_u32 s%d, s%d, s%d" % (sFP, sFP, sR))
    g.e("s_lshl_b32 s%d, s%d, 11" % (sFP, sFP))
    g.e("s_lshl_b32 s%d, s3, 9" % sT0)
    g.e("s_add_u32 s%d, s%d, s%d" % (sFP, sFP, sT0))
    g.e("s_add_u32 s%d, s%d, 0x%x" % (sFP, sFP, WS_FP))
    lds_spin(g, vZ, F_O, 8, 16, sleep=0)
    g.stamp(11)
    for k in range(4):
        g.e("ds_read_b128 %s, v%d offset:%d" % (vr(16 + 4 * k, 4), vOW, OW + k * 2048))
    g.e("s_waitcnt lgkmcnt(2)")
    for k in range(4):
        g.e("v_add_f32 v%d, v%d, v%d" % (16 + k, 16 + k, 20 + k))
    g.e("s_waitcnt lgkmcnt(0)")
    for k in range(4):
        g.e("v_add_f32 v%d, v%d, v%d" % (24 + k, 24 + k, 28 + k))
    for k in range(4):
        g.e("v_add_f32 v%d, v%d, v%d" % (16 + k, 16 + k, 24 + k))
    swap_reduce(g, "v_add_f32", [16, 17, 18, 19], [20, 21, 22, 23], 32)
    for k in range(4):
        tag(g, 16 + k, 16 + k, vT)
    g.e("s_mov_b32 exec_hi, 0")
    g.e("buffer_store_dwordx4 v[16:19], v%d, s[%d:%d], s%d offen sc1" % (vPUB, dWS, dWS + 3, sPUB))
    g.e("s_mov_b64 exec, -1")
    g.stamp(12)
    O0, O1, SG = 16, 20, 24
    poll_loop(g, [
        "buffer_load_dwordx4 %s, v%d, s[%d:%d], s%d offen sc1" % (vr(O0, 4), vH1, dWS, dWS + 3, sH1),
        "buffer_load_dwordx4 %s, v%d, s[%d:%d], s%d offen offset:128 sc1" % (vr(O1, 4), vH1, dWS, dWS + 3, sH1),
        "buffer_load_dwordx4 %s, v%d, s[%d:%d], s%d offen sc1" % (vr(SG, 4), vH1S, dWS, dWS + 3, sH1S),
    ], list(range(O0, O0 + 12)), 28)
    g.stamp(13)
    g.e("v_mov_b32 v28, v%d" % SG)
    dpp_reduce(g, "v_max_f32", [28], [2, 4, 8])
    g.e("v_sub_f32 v28, v%d, v28" % SG)
    g.e("v_mul_f32 v28, s%d, v28" % sL2E)
    g.e("v_exp_f32 v28, v28")
    g.nop(1)
    g.e("v_mul_f32 v29, v28, v%d" % (SG + 1))
    dpp_reduce(g, "v_add_f32", [29], [2, 4, 8])
    g.e("v_rcp_f32 v29, v29")
    g.nop(1)
    g.e("v_mul_f32 v28, v28, v29")
    for k in range(8):
        g.e("v_mul_f32 v%d, v28, v%d" % (O0 + k, O0 + k))
    dpp_reduce(g, "v_add_f32", [O0 + k for k in range(8)], [2, 4, 8])
    A0, A1 = 24, 28
    g.e("v_cvt_pk_bf16_f32 v%d, v%d, v%d" % (A0, O0, O0 + 1))
    g.e("v_cvt_pk_bf16_f32 v%d, v%d, v%d" % (A0 + 1, O0 + 2, O0 + 3))
    g.e("v_cvt_pk_bf16_f32 v%d, v%d, v%d" % (A1, O1, O1 + 1))
    g.e("v_cvt_pk_bf16_f32 v%d, v%d, v%d" % (A1 + 1, O1 + 2, O1 + 3))
    g.nop(1)
    g.e("v_mov_b32_dpp v%d, v%d quad_perm:[1,1,3,3] row_mask:0xf bank_mask:0xf" % (A0 + 2, A0))
    g.e("v_mov_b32_dpp v%d, v%d quad_perm:[1,1,3,3] row_mask:0xf bank_mask:0xf" % (A0 + 3, A0 + 1))
    g.e("v_mov_b32_dpp v%d, v%d quad_perm:[1,1,3,3] row_mask:0xf bank_mask:0xf" % (A1 + 2, A1))
    g.e("v_mov_b32_dpp v%d, v%d quad_perm:[1,1,3,3] row_mask:0xf bank_mask:0xf" % (A1 + 3, A1 + 1))
    g.nop(2)
    for e in range(8):
        mfma(g, X + 4 * e, A0, B + 4 * e, None)
    for e in range(8):
        mfma(g, X + 4 * e, A1, P + 4 * e, X + 4 * e)
    g.nop(8)
    for k in range(4):
        g.e("v_cndmask_b32 v%d, v%d, v%d, s[%d:%d]" % (16 + k, X + 4 * k, X + 4 * (4 + k), sMASK, sMASK + 1))
    for k in range(4):
        g.e("v_fma_f32 v%d, v%d, v%d, v%d" % (16 + k, vGATE, 16 + k, FF + k))
    for k in range(4):
        tag(g, 16 + k, 16 + k, vT)
    g.e("s_mov_b32 exec_hi, 0")
    g.e("buffer_store_dwordx4 v[16:19], v%d, s[%d:%d], s%d offen sc1" % (vPUB, dWS, dWS + 3, sFP))
    g.e("s_mov_b64 exec, -1")
    g.stamp(14)
    g.e("s_and_b32 s%d, s%d, 3" % (sT0, sS))
    g.e("s_or_b32 s%d, s%d, s3" % (sT0, sT0))
    g.e("s_cmp_eq_u32 s%d, 0" % sT0)
    g.e("s_cbranch_scc0 L_AUX_END")
    g.e("s_lshl_b32 s%d, s%d, 1" % (sT1, sHKV))
    g.e("s_lshr_b32 s%d, s%d, 2" % (sT0, sS))
    g.e("s_add_u32 s%d, s%d, s%d" % (sT1, sT1, sT0))
    g.e("v_lshrrev_b32 v6, 3, v0")
    g.e("v_lshlrev_b32 v6, 11, v6")
    g.e("v_and_b32 v7, 7, v0")
    g.e("v_lshlrev_b32 v7, 4, v7")
    g.e("v_add_u32 v6, v6, v7")
    g.e("s_lshl_b32 s%d, s%d, 17" % (sT2, sB))
    g.e("s_lshl_b32 s%d, s%d, 7" % (sT0, sT1))
    g.e("s_add_u32 s%d, s%d, s%d" % (sT2, sT2, sT0))
    g.e("s_add_u32 s%d, s%d, 0x%x" % (sT2, sT2, WS_FP))
    FS = 52
    for n in range(8):
        g.e("s_add_u32 s%d, s%d, %d" % (FS + n, sT2, n * 16384))
    srd(g, dOUT, sOUT, 4096)
    R = 40
    poll_loop(g, [
        "buffer_load_dwordx4 %s, v6, s[%d:%d], s%d offen sc1" % (vr(R + 4 * n, 4), dWS, dWS + 3, FS + n) for n in range(8)
    ], list(range(R, R + 32)), 16)
    g.stamp(15)
    for step in (4, 2, 1):
        for n in range(step):
            for k in range(4):
                g.e("v_add_f32 v%d, v%d, v%d" % (R + 4 * n + k, R + 4 * n + k, R + 4 * (n + step) + k))
    regs = [R + k for k in range(4)]
    dpp_reduce(g, "v_add_f32", regs, [8])
    swap_reduce(g, "v_add_f32", regs, [R + 4 + k for k in range(4)], 16)
    swap_reduce(g, "v_add_f32", regs, [R + 4 + k for k in range(4)], 32)
    g.e("v_cvt_pk_bf16_f32 v16, v%d, v%d" % (R, R + 1))
    g.e("v_cvt_pk_bf16_f32 v17, v%d, v%d" % (R + 2, R + 3))
    g.e("v_lshlrev_b32 v7, 3, v0")
    g.e("s_lshl_b32 s%d, s%d, 10" % (sT2, sB))
    g.e("s_lshl_b32 s%d, s%d, 6" % (sT0, sT1))
    g.e("s_add_u32 s%d, s%d, s%d" % (sT2, sT2, sT0))
    g.e("s_mov_b64 exec, 0xff")
    g.e("buffer_store_dwordx2 v[16:17], v7, s[%d:%d], s%d offen" % (dOUT, dOUT + 3, sT2))
    g.e("s_mov_b64 exec, -1")
    g.e("s_waitcnt vmcnt(0)")
    g.stamp(16)
    g.lab("L_AUX_END")
    write_stamps(g)
    g.e("s_endpgm")


def gen(opt):
    g = G(opt)
    g.L.append(HEADER.rstrip("\n"))
    g.L.append("; @launch grid=(256,1,1) block=(768,1,1) lds=%d" % LDS_SIZE)
    g.L.append('.amdgcn_target "amdgcn-amd-amdhsa--gfx950"')
    g.L.append(".text")
    g.L.append(".globl %s_kernel" % NAME)
    g.L.append(".p2align 8")
    g.L.append(".type %s_kernel,@function" % NAME)
    g.L.append("%s_kernel:" % NAME)
    prologue(g)
    aux_wave(g)
    kv_wave(g)
    g.lab("L_END")
    g.e("s_endpgm")
    g.L.append('.section .rodata,"a"')
    g.L.append(".p2align 6")
    g.L.append(".amdhsa_kernel %s_kernel" % NAME)
    g.L.append("  .amdhsa_next_free_vgpr 168")
    g.L.append("  .amdhsa_next_free_sgpr 102")
    g.L.append("  .amdhsa_accum_offset 168")
    g.L.append("  .amdhsa_group_segment_fixed_size 0")
    g.L.append("  .amdhsa_kernarg_size 104")
    g.L.append("  .amdhsa_user_sgpr_count 2")
    g.L.append("  .amdhsa_user_sgpr_kernarg_segment_ptr 1")
    g.L.append("  .amdhsa_system_sgpr_workgroup_id_x 1")
    g.L.append(".end_amdhsa_kernel")
    return g.text()


def main():
    ap = argparse.ArgumentParser()
    ap.add_argument("-o", default="k.s")
    ap.add_argument("--stamps", type=int, default=0)
    ap.add_argument("--ntk", type=int, default=1)
    ap.add_argument("--ntv", type=int, default=1)
    ap.add_argument("--ntw", type=int, default=1)
    ap.add_argument("--ntwo", type=int, default=0)
    ap.add_argument("--cut", default="")
    ap.add_argument("--prio", type=int, default=1)
    ap.add_argument("--qsleep", type=int, default=0)
    ap.add_argument("--early", type=int, default=0)
    opt = ap.parse_args()
    open(opt.o, "w").write(gen(opt))


if __name__ == "__main__":
    main()
```
